```python
import torch

def _softmax(x, axis=-1):
    return torch.softmax(x, dim=axis)

def _gelu(x):
    return torch.nn.functional.gelu(x, approximate='tanh')

def _silu(x):
    return torch.nn.functional.silu(x)

def _sigmoid(x):
    return torch.sigmoid(x)

def _layernorm(x, axis=-1, eps=1e-05):
    m = x.mean(dim=axis, keepdim=True)
    v = x.var(dim=axis, keepdim=True, unbiased=False)
    return (x - m) / torch.sqrt(v + eps)

def _scatter_add(tgt, idx, src, axis=0):
    return tgt.clone().index_add_(axis, idx, src)

def _segment_sum(src, seg, n):
    out = torch.zeros((n,) + src.shape[1:], dtype=src.dtype)
    return out.index_add_(0, seg, src)

def _pad(x, pw):
    flat = tuple((v for pair in reversed(pw) for v in pair))
    return torch.nn.functional.pad(x, flat)
kernel_name = 'adaLN_cond__ssm_conv_h3__glu_gated_bilinear__prompt'

def setup_inputs():

    _w = lambda a: (lambda t: t.to(torch.bfloat16) if t.is_floating_point() else t)(torch.as_tensor(a))

    def _A_setup():
        B, S, D = (1, 2048, 448)
        ks = 4
        return {'q': _w((lambda *s: torch.randn(*s, dtype=torch.bfloat16) * 0.05)(B, S, D)), 'k': _w((lambda *s: torch.randn(*s, dtype=torch.bfloat16) * 0.8)(B, S, D)), 'v': _w((lambda *s: torch.randn(*s, dtype=torch.bfloat16) * 0.8)(B, S, D)), 'shift_k': _w((lambda *s: torch.randn(*s, dtype=torch.bfloat16) * 0.8)(D, ks) * 0.5), 'ssm_k': _w((lambda *s: torch.randn(*s, dtype=torch.bfloat16) * 0.8)(D, S) * (1.0 / S ** 0.5)), 'ssm_D': _w((lambda *s: torch.randn(*s, dtype=torch.bfloat16) * 0.8)(D))}
    _A_in = _A_setup()

    def _B_setup():
        B, S, D, F = (1, 2048, 448, 1792)
        return {'x': _w((lambda *s: torch.randn(*s, dtype=torch.bfloat16) * 0.05)(B, S, D)), 'w_gate': _w((lambda *s: torch.randn(*s, dtype=torch.bfloat16) * 0.8)(D, F) * D ** (-0.5)), 'w_up': _w((lambda *s: torch.randn(*s, dtype=torch.bfloat16) * 0.8)(D, F) * D ** (-0.5)), 'w_down': _w((lambda *s: torch.randn(*s, dtype=torch.bfloat16) * 0.8)(F, D) * F ** (-0.5))}
    _B_in = _B_setup()
    return {'A_q': _A_in['q'], 'A_k': _A_in['k'], 'A_v': _A_in['v'], 'A_shift_k': _A_in['shift_k'], 'A_ssm_k': _A_in['ssm_k'], 'A_ssm_D': _A_in['ssm_D'], 'B_x': _B_in['x'], 'B_w_gate': _B_in['w_gate'], 'B_w_up': _B_in['w_up'], 'B_w_down': _B_in['w_down'], 'c': _w((lambda *s: torch.randn(*s, dtype=torch.bfloat16) * 0.2)(1, 448) * 8.0), 'w_mod': _w((lambda *s: torch.randn(*s, dtype=torch.bfloat16) * 0.2)(448, 6 * 448) * 448 ** (-0.5) * 8.0)}

def reference(A_q, A_k, A_v, A_shift_k, A_ssm_k, A_ssm_D, B_x, B_w_gate, B_w_up, B_w_down, c, w_mod):

    def _A_ref(q, k, v, shift_k, ssm_k, ssm_D):
        B, S, D = q.shape
        ks = shift_k.shape[-1]
        k_pad = _pad(k, ((0, 0), (ks - 1, 0), (0, 0)))
        k_shift = torch.zeros_like(k)
        for t in range(ks):
            k_shift = k_shift + k_pad[:, t:t + S, :] * shift_k[:, ks - 1 - t][None, None, :]
        kv = k_shift * v
        L = 2 * S
        kv_pad = _pad(kv, ((0, 0), (0, S), (0, 0)))
        kf_pad = _pad(ssm_k, ((0, 0), (0, S)))
        kv_f = (lambda x, axes=(-2, -1): torch.fft.rfft2(x.float(), dim=axes))(kv_pad[:, None, :, :], axes=(1, 2))
        kf_f = (lambda x, axes=(-2, -1): torch.fft.rfft2(x.float(), dim=axes))(kf_pad[:, None, :], axes=(1, 2))
        kf_f = (lambda x, *d: x.permute(*d))(kf_f, 1, 2, 0)
        y_f = kv_f * kf_f[None, :, :, :]
        y = (lambda x, s, axes=(-2, -1): torch.fft.irfft2(x, s=s, dim=axes).to(torch.bfloat16))(y_f, (1, L), axes=(1, 2))[:, 0, :S, :]
        y = y + kv * ssm_D[None, None, :]
        return q * y

    def _B_ref(x, w_gate, w_up, w_down):
        g = torch.einsum('bsd,df->bsf', x, w_gate)
        u = torch.einsum('bsd,df->bsf', x, w_up)
        h = g * u
        return torch.einsum('bsf,fd->bsd', h, w_down)
    x = A_q
    mod = (_silu(c) @ w_mod).reshape(c.shape[0], 6, 1, -1)
    sa, ca, ga, sb, cb, gb = (mod[:, 0].clone(), mod[:, 1].clone(), mod[:, 2].clone(), mod[:, 3].clone(), mod[:, 4].clone(), mod[:, 5].clone())
    h = _layernorm(x, axis=-1) * (1 + ca) + sa
    x = x + ga * _A_ref(h, A_k, A_v, A_shift_k, A_ssm_k, A_ssm_D)
    h = _layernorm(x, axis=-1) * (1 + cb) + sb
    x = x + gb * _B_ref(h, B_w_gate, B_w_up, B_w_down)
    return x
```

```python
NAME = "adaLN_cond__ssm_conv_h3__glu_gated_bilinear__prompt"

class Asm:
    def __init__(self):
        self.lines = []
    def __call__(self, s=""):
        for l in s.split("\n"):
            l = l.strip()
            if l == "":
                continue
            if l.endswith(":") or l.startswith("."):
                self.lines.append(l)
            else:
                self.lines.append("    " + l)
    def text(self):
        return "\n".join(self.lines) + "\n"

def kd(name, vgpr, sgpr=102, accum=None, wg_y=False):
    if accum is None:
        accum = min(256, (vgpr + 3) // 4 * 4)
    s = [".section .rodata,\"a\"", ".p2align 6", ".amdhsa_kernel %s" % name,
         "  .amdhsa_next_free_vgpr %d" % vgpr, "  .amdhsa_next_free_sgpr %d" % sgpr,
         "  .amdhsa_accum_offset %d" % accum, "  .amdhsa_group_segment_fixed_size 0",
         "  .amdhsa_kernarg_size 120", "  .amdhsa_user_sgpr_count 2",
         "  .amdhsa_user_sgpr_kernarg_segment_ptr 1", "  .amdhsa_system_sgpr_workgroup_id_x 1"]
    if wg_y:
        s.append("  .amdhsa_system_sgpr_workgroup_id_y 1")
    s += ["  .amdhsa_float_denorm_mode_32 3", ".end_amdhsa_kernel"]
    return "\n".join(s) + "\n"

def entry(name):
    return ".text\n.globl %s\n.p2align 8\n.type %s,@function\n%s:\n" % (name, name, name)

HEAD = ".amdgcn_target \"amdgcn-amd-amdhsa--gfx950\"\n"
```

```python
from prog import *
from gen import *

ACC = (48, 80)
HF = 32

def wd_reg(ks, t):
    if ks < 4: return "a", 224 + 8 * ks + 4 * t
    return "v", 112 + 8 * (ks - 4) + 4 * t
def rr(kind, b, n): return (v if kind == "v" else ar)(b, n)

def ffn(G):
    p = G.p
    p("""
    s_lshr_b32 s57, s52, 1
    s_lshl_b32 s57, s57, 2
    s_add_u32 s57, s57, s54
    s_mul_i32 s62, s57, %d
    s_mul_i32 s58, s3, 7168
    s_add_u32 s62, s62, s58
    s_add_u32 s62, s62, %d
    s_add_u32 s63, s58, %d
    v_add_u32 v2, s63, v11
    v_and_b32 v4, 31, v1
    v_lshrrev_b32 v5, 5, v1
    v_bfe_u32 v6, v1, 1, 3
    v_mul_u32_u24 v7, 896, v4
    v_xor_b32 v12, v5, v6
    v_xor_b32 v13, 2, v12
    v_xor_b32 v14, 4, v12
    v_xor_b32 v15, 6, v12
    v_lshl_add_u32 v12, v12, 4, v7
    v_lshl_add_u32 v13, v13, 4, v7
    v_lshl_add_u32 v14, v14, 4, v7
    v_lshl_add_u32 v15, v15, 4, v7
    v_bfe_u32 v7, v1, 2, 3
    v_mul_u32_u24 v3, 896, v7
    v_lshl_add_u32 v3, v5, 6, v3
    v_and_b32 v7, 3, v1
    v_lshl_add_u32 v3, v7, 4, v3
    s_mul_i32 s58, s3, %d
    s_lshl_b32 s59, s55, 7
    s_add_u32 s58, s58, s59
    v_add_u32 v3, s58, v3
    s_mul_i32 s64, s3, 12288
    s_add_u32 s64, s64, %d
    """ % (4 * TILE, H2, STG, 448 * 896, R0))
    def h2dma(t):
        g = []
        for i in range(7):
            pre = []
            if i == 0: pre = I("s_add_u32 m0, s63, %d\ns_add_u32 s57, s62, %d" % (t * TILE, t * TILE))
            if i == 4: pre = I("s_add_u32 m0, m0, 4096\ns_add_u32 s57, s57, 4096")
            g.append(pre + VM("buffer_load_dwordx4 v11, %s, s57 offen offset:%d sc1 lds" % (WS, 1024 * (i % 4)), "h2_%d" % t))
        return g
    def verify_items(t):
        g = []
        off = (t % 2) * TILE
        for rnd, idx in enumerate(((0, 1), (2, 3), (4, 5), (6,))):
            for q, i in enumerate(idx):
                g.append((WVM("h2_%d" % t) if i == 0 else []) + DS("ds_read_b128 %s, v2 offset:%d" % (v(24 + 4 * q, 4), off + 1024 * i), "vf%d_%d" % (t, i)))
            for q, i in enumerate(idx):
                b = 24 + 4 * q
                first = "v_max3_u32 v10, v%d, v%d, v%d\nv_max_u32 v10, v10, v%d" % (b, b + 1, b + 2, b + 3)
                nxt = "v_max3_u32 v10, v10, v%d, v%d\nv_max3_u32 v10, v10, v%d, v%d" % (b, b + 1, b + 2, b + 3)
                g.append(WDS("vf%d_%d" % (t, i)) + I(first if i == 0 else nxt))
        return g
    def verify_branch(t):
        o = p.out
        o("L_h%d_retry:\ns_mov_b32 s67, 0\nL_h%d_loop:" % (t, t))
        for grp in h2dma(t):
            o("\n".join(x[1] for x in grp))
        o("s_waitcnt vmcnt(0)")
        for grp in verify_items(t):
            for x in grp:
                if x[0] == "wds": o("s_waitcnt lgkmcnt(0)")
                elif x[0] != "wvm": o(x[1])
        o("v_cmp_eq_u32 vcc, -1, v10\ns_cbranch_vccz L_h%d_ok" % t)
        o("s_add_u32 s67, s67, 1\ns_cmp_lt_u32 s67, %d\ns_cbranch_scc1 L_h%d_loop\ns_branch L_h%d_ok" % (SPIN, t, t))
        return I("v_cmp_eq_u32 vcc, -1, v10\ns_cbranch_vccnz L_h%d_retry\nL_h%d_ok:" % (t, t))
    def wd_dma(ks):
        a = I("s_add_u32 m0, s64, %d\ns_mov_b32 s58, %d" % ((ks % 6) * 2048, ks * 16 * 896)) + \
            VM("buffer_load_dwordx4 v3, %s, s58 offen lds" % SD, "wd%d" % ks)
        b = I("s_add_u32 m0, m0, 1024\ns_add_u32 s58, s58, %d" % (8 * 896)) + \
            VM("buffer_load_dwordx4 v3, %s, s58 offen lds" % SD, "wd%d" % ks)
        return [a, b]
    def wd_tr(ks, dst=None, tag=None):
        g = []
        for t in range(2):
            kind, b = wd_reg(ks, t) if dst is None else ("v", dst + 4 * t)
            for i in range(2):
                g.append((WVM("wd%d" % ks) if (t == 0 and i == 0) else []) + DS("ds_read_b64_tr_b16 %s, v23 offset:%d" % (
                    rr(kind, b + 2 * i, 2), (ks % 6) * 2048 + i * 1024 + t * 512), tag or "wt%d" % ks))
        return g
    def hread(t, ks):
        return DS("ds_read_b128 %s, v%d offset:%d" % (v(HF + 4 * (ks % 4), 4), 12 + ks % 4, (t % 2) * TILE + 128 * (ks // 4)), "hf%d_%d" % (t, ks))
    def epi1(t):
        A = ACC[t % 2]
        g = []
        for i in range(16):
            g.append(I("v_mul_f32 v%d, v%d, v%d" % (A + i, A + i, A + 16 + i)))
        for ph in range(2):
            for i in range(4):
                g.append(I("v_cvt_pk_bf16_f32 v%d, v%d, v%d" % (A + 16 + 4 * ph + i, A + 8 * ph + 2 * i, A + 8 * ph + 2 * i + 1)))
            pre = I("s_add_u32 s59, s61, %d" % (t * 112 * 1024)) if ph == 0 else []
            g.append(pre + VM("buffer_store_dwordx4 %s, v11, %s, s59 offen offset:%d sc1" % (v(A + 16 + 4 * ph, 4), WS, 1024 * ph), "hh_st%d" % t))
        return g
    def hhload(rt, ks):
        pre = []
        if ks % 4 == 0:
            pre = I("s_add_u32 s60, s65, %d" % (rt * 2 * 112 * 1024 + 1024 * ks))
        return pre + VM("buffer_load_dwordx4 %s, v11, %s, s60 offen offset:%d sc1" % (ar(4 * (28 * rt + ks), 4), WS, 1024 * (ks % 4)), "hh%d_%d" % (rt, ks))

    p.wvm("h2_st")
    for t in range(4): p.add(flat(h2dma(t)))
    p("""
    s_lshl_b32 s57, s52, 3
    s_lshr_b32 s58, s54, 1
    s_lshl_b32 s58, s58, 2
    s_add_u32 s57, s57, s58
    s_and_b32 s58, s54, 1
    s_add_u32 s57, s57, s58
    s_mul_i32 s65, s57, %d
    s_mul_i32 s58, s3, 28672
    s_add_u32 s65, s65, s58
    s_add_u32 s65, s65, %d
    s_mul_i32 s66, s57, %d
    s_mul_i32 s58, s3, %d
    s_add_u32 s66, s66, s58
    s_lshl_b32 s58, s55, 7
    s_add_u32 s66, s66, s58
    """ % (112 * 1024, HH, TILE, 8 * 896))
    p.add(flat(verify_items(0)))
    p.add(verify_branch(0))
    p("s_barrier")
    p.add(G.stamp("h2_in"))
    for ks in range(3): p.add(hread(0, ks))
    for t in range(4):
        A = ACC[t % 2]
        M = []
        for ks in range(28):
            for X in range(2):
                pre = WDS("hf%d_%d" % (t, ks)) if X == 0 else []
                grp = pre + I("v_mfma_f32_32x32x16_bf16 %s, %s, %s, %s" % (
                    v(A + 16 * X, 16), ar(8 * ks + 4 * X, 4), v(HF + 4 * (ks % 4), 4), "0" if ks == 0 else v(A + 16 * X, 16)))
                if X == 0:
                    if ks + 3 < 28: grp += hread(t, ks + 3)
                    elif t < 3:
                        if ks == 25:
                            grp += verify_branch(t + 1) + (WDS("hf2_27") if t == 2 else []) + I("s_barrier")
                        grp += DS("ds_read_b128 %s, v%d offset:%d" % (v(HF + 4 * ((ks + 3) % 4), 4), 12 + (ks + 3) % 4,
                                  ((t % 2) + 1) * TILE), "hf%d_%d" % (t + 1, ks - 25))
                M.append(grp)
        fill = []
        if t < 3:
            lo, hi = (0, 10, 19, 28)[t], (0, 10, 19, 28)[t + 1]
            for ks in range(lo, hi):
                if 0 <= ks - 4 < 22: fill += wd_tr(ks - 4)
                pre = WDS("wt%d" % (ks - 6)) if ks >= 6 else []
                d = wd_dma(ks)
                fill += [pre + d[0], d[1]]
            M = weave(M, fill, 1, 50)
            if t == 1:
                M[20] += I("v_add_u32 v2, %d, v2" % (2 * TILE))
            M = weave(M, verify_items(t + 1), 30, 48)
            if t == 1:
                M[55] += I("\n".join("v_add_u32 v%d, %d, v%d" % (12 + i, 2 * TILE, 12 + i) for i in range(4)))
        else:
            loads = [hhload(0, ks) for ks in range(28)]
            for ks in range(14):
                M[2 * ks + 3] += loads[2 * ks]
                M[2 * ks + 4] += loads[2 * ks + 1]
        if t > 0:
            M = weave(M, epi1(t - 1), 2, 28)
        p.add(flat(M))
        p.add(G.stamp("g1_%d" % t) if t in (0, 3) else [])
    p("""
    v_lshrrev_b32 v6, 3, v1
    v_and_b32 v7, 7, v1
    v_mul_u32_u24 v8, 896, v6
    v_lshl_add_u32 v8, v7, 4, v8
    v_lshlrev_b32 v9, 4, v7
    s_lshl_b32 s57, s55, 7
    s_add_u32 s57, s57, %d
    v_mul_u32_u24 v2, %d, v4
    v_lshl_add_u32 v2, v5, 4, v2
    s_mul_i32 s58, s3, %d
    v_add_u32 v2, s58, v2
    v_mul_u32_u24 v3, %d, v6
    v_lshl_add_u32 v3, v7, 5, v3
    s_mul_i32 s58, s3, %d
    v_add_u32 v3, s58, v3
    s_add_u32 s62, s66, %d
    s_add_u32 s63, s62, %d
    """ % (MOD + 5 * 896, REDP, REDW, REDP, 8 * REDP, X2, 2 * TILE))
    p.add(flat(epi1(3)))
    ldX = ["buffer_load_dwordx4 v[24:27], v8, %s, s62 offen sc1" % WS, "buffer_load_dwordx4 v[28:31], v8, %s, s63 offen sc1" % WS]
    p.vm("buffer_load_dwordx4 v[12:15], v9, %s, s57 offen sc1" % WS, "gb")
    for l in ldX: p.vm(l, "x2")
    p("s_mov_b32 s64, 0")
    for rt in range(2):
        A = ACC[rt]
        p("L_g2_%d:" % rt)
        M = []
        for ks in range(28):
            for t in range(2):
                pre = []
                if t == 0:
                    pre += WVM("hh%d_%d" % (rt, ks))
                    if ks < 22: pre += WDS("wt%d" % ks)
                    else: pre += WDS("wl%d_%d" % (rt, ks))
                kind, b = wd_reg(ks, t) if ks < 22 else ("v", HF + 8 * (ks % 2) + 4 * t)
                grp = pre + I("v_mfma_f32_32x32x16_bf16 %s, %s, %s, %s" % (
                    v(A + 16 * t, 16), rr(kind, b, 4), ar(4 * (28 * rt + ks), 4), "0" if ks == 0 else v(A + 16 * t, 16)))
                if t == 1 and 22 <= ks + 2 < 28:
                    grp += flat(wd_tr(ks + 2, HF + 8 * (ks % 2), "wl%d_%d" % (rt, ks + 2)))
                M.append(grp)
        if rt == 0:
            late = [hhload(1, ks) for ks in range(28)]
            late[0] = WVM("hh_st3") + late[0]
            M = weave(M, late, 30, 56)
        p.add(flat(M))
        p("v_cmp_u_f32 vcc, v%d, v%d" % (A + 16, A + 16))
        p("s_cbranch_vccnz L_g2_%d_nan\nL_g2_%d_ok:" % (rt, rt))
        o = p.out
        o("""
        L_g2_{r}_nan:
        s_bitcmp1_b32 s64, {r}
        s_cbranch_scc1 L_g2_{r}_ok
        s_bitset1_b32 s64, {r}
        s_mov_b32 s67, 0
        L_g2_{r}_scan:
        s_add_u32 s60, s65, {base}
        s_add_u32 s59, s60, 28672
        L_g2_{r}_next:
        buffer_load_dwordx4 v[16:19], v11, {ws}, s60 offen sc1
        s_waitcnt vmcnt(0)
        v_max3_u32 v10, v16, v17, v18
        v_max_u32 v10, v10, v19
        v_cmp_eq_u32 vcc, -1, v10
        s_cbranch_vccz L_g2_{r}_adv
        s_add_u32 s67, s67, 1
        s_cmp_lt_u32 s67, {spin}
        s_cbranch_scc1 L_g2_{r}_next
        L_g2_{r}_adv:
        s_add_u32 s60, s60, 1024
        s_cmp_lt_u32 s60, s59
        s_cbranch_scc1 L_g2_{r}_next
        """.format(r=rt, base=rt * 2 * 112 * 1024, ws=WS, spin=SPIN))
        for ks in range(28):
            o("\n".join(x[1] for x in hhload(rt, ks)))
        o("s_waitcnt vmcnt(0)\ns_branch L_g2_%d" % rt)
        for t in range(2):
            for q in range(4):
                p.ds("ds_write_b128 v2, %s offset:%d" % (v(A + 16 * t + 4 * q, 4), RED + rt * 4 * REDW + 128 * t + 32 * q))
        p.add(G.stamp("g2_%d" % rt))
    p.wvm("x2")
    chk = [x[1] for x in G.sentinel_max(10, range(24, 32))] + ["v_cmp_eq_u32 vcc, -1, v10"]
    G.spin("x2", ldX, chk)
    for i in range(4): p.add(G.unpack(112 + 2 * i, 12 + i))
    for i in range(8): p.add(G.unpack(120 + 2 * i, 24 + i))
    p("s_waitcnt lgkmcnt(0)\ns_barrier")
    for rt in range(2):
        for w in range(4):
            for q in range(2):
                p.ds("ds_read_b128 %s, v3 offset:%d" % (v(48 + 32 * rt + 8 * w + 4 * q, 4), RED + (rt * 4 + w) * REDW + 16 * q), "rd%d_%d" % (rt, w))
    p("s_add_u32 s63, s66, %d" % (2 * TILE))
    for rt in range(2):
        b = 48 + 32 * rt
        for w in range(1, 4):
            p.wds("rd%d_%d" % (rt, w))
            for i in range(4):
                p("v_pk_add_f32 %s, %s, %s" % (v(b + 2 * i, 2), v(b + 2 * i, 2), v(b + 8 * w + 2 * i, 2)))
        for i in range(4):
            p("v_pk_fma_f32 %s, %s, %s, %s" % (v(b + 2 * i, 2), v(b + 2 * i, 2), v(112 + 2 * i, 2), v(120 + 8 * rt + 2 * i, 2)))
        for i in range(4):
            p("v_cvt_pk_bf16_f32 v%d, v%d, v%d" % (b + 8 + i, b + 2 * i, b + 2 * i + 1))
        p.vm("buffer_store_dwordx4 %s, v8, %s, %s offen" % (v(b + 8, 4), SO, ("s66", "s63")[rt]), "out")
```

```python
import re

REG = re.compile(r"\b([vas])\[(\d+):(\d+)\]|\b([vas])(\d+)\b|\b(vcc|exec|m0|scc)\b")
TRANS = ("v_exp_f32", "v_log_f32", "v_rcp_f32", "v_rsq_f32", "v_sqrt_f32", "v_sin_f32", "v_cos_f32")

def regs(op):
    out = set()
    for m in REG.finditer(op):
        if m.group(1):
            out |= {(m.group(1), i) for i in range(int(m.group(2)), int(m.group(3)) + 1)}
        elif m.group(4):
            out.add((m.group(4), int(m.group(5))))
        else:
            out.add((m.group(6), 0))
    return out

def split_ops(s):
    ops, depth, cur = [], 0, ""
    for ch in s:
        if ch == "[": depth += 1
        if ch == "]": depth -= 1
        if ch == "," and depth == 0:
            ops.append(cur.strip()); cur = ""
        else:
            cur += ch
    if cur.strip():
        ops.append(cur.strip())
    return ops

class I:
    def __init__(self, text):
        self.text = text
        t = text.split(";")[0].strip()
        p = t.split(None, 1)
        self.mn = p[0]
        ops = split_ops(p[1]) if len(p) > 1 else []
        mods = ""
        if ops:
            last = ops[-1].split(None, 1)
            if len(last) > 1 and not last[0].startswith("vmcnt") and not last[0].startswith("lgkmcnt"):
                ops[-1] = last[0]; mods = last[1]
        self.ops, self.mods = ops, mods
        mn = self.mn
        self.mfma = mn.startswith("v_mfma")
        self.valu = mn.startswith("v_") and not self.mfma
        self.vmem = mn.startswith("buffer_") or mn.startswith("global_")
        self.ds = mn.startswith("ds_")
        self.salu = mn.startswith("s_")
        self.w, self.r = set(), set()
        self.srcc = set(); self.srcab = set(); self.stdata = set()
        R = [regs(o) for o in ops]
        if self.mfma:
            self.w = R[0]; self.srcab = R[1] | R[2]; self.srcc = R[3]; self.r = self.srcab | self.srcc
            self.passes = 8 if "32x32" in mn else 4
        elif self.valu:
            nd = 1
            if mn.startswith(("v_add_co", "v_sub_co", "v_addc_co", "v_subb_co")): nd = 2
            for x in R[:nd]: self.w |= x
            for x in R[nd:]: self.r |= x
            if mn.startswith(("v_fmac", "v_dot2c", "v_pk_fmac", "v_writelane")) or "dpp" in mn or "row_" in mods or "quad_perm" in mods:
                self.r |= R[0]
            if mn.startswith("v_permlane"):
                self.w |= R[1]; self.r |= R[0]
            if mn.startswith("v_cmpx"): self.w.add(("exec", 0))
        elif self.vmem:
            lds = " lds" in (" " + mods)
            if "load" in mn and not lds:
                self.w = R[0]
                for x in R[1:]: self.r |= x
            else:
                for x in R: self.r |= x
                if "store" in mn and ("x3" in mn or "x4" in mn):
                    self.stdata = R[0] if mn.startswith("buffer_") else R[1]
                if lds: self.r.add(("m0", 0))
            self.dma = lds
        elif self.ds:
            if mn.startswith(("ds_read", "ds_bpermute", "ds_permute", "ds_swizzle")):
                self.w = R[0]
                for x in R[1:]: self.r |= x
            else:
                for x in R: self.r |= x
        elif self.salu:
            if mn.startswith(("s_cmp", "s_cbranch", "s_branch", "s_waitcnt", "s_barrier", "s_nop", "s_endpgm", "s_setprio", "s_sleep", "s_bitcmp")):
                for x in R: self.r |= x
            else:
                if R: self.w = R[0]
                for x in R[1:]: self.r |= x
                if "saveexec" in mn: self.w = self.w | {("exec", 0)}
        self.dpp = self.valu and ("row_" in mods or "quad_perm" in mods or "wave_" in mods)
        self.states = 1
        if mn == "s_nop":
            self.states = int(ops[0], 0) + 1

def isv(s): return {x for x in s if x[0] in "va"}
def iss(s): return {x for x in s if x[0] in ("s", "vcc")}

def need(p, c):
    n = 0
    if p.valu:
        if c.mfma and isv(p.w) & c.r: n = max(n, 2)
        if c.vmem and iss(p.w) & c.r: n = max(n, 5)
        if c.valu and iss(p.w) & c.r:
            n = max(n, 4 if c.mn.startswith(("v_readlane", "v_writelane")) else 2)
        if c.valu and c.mn.startswith(("v_readlane", "v_readfirstlane")) and isv(p.w) & c.r: n = max(n, 1)
        if c.valu and (c.dpp or c.mn.startswith("v_permlane")) and isv(p.w) & c.r: n = max(n, 2)
        if p.mn.startswith(TRANS) and (c.valu or c.mfma) and isv(p.w) & c.r: n = max(n, 1)
        if ("exec", 0) in p.w and (c.dpp or c.mfma or c.mn.startswith(("v_permlane", "v_readlane", "v_readfirstlane"))): n = max(n, 5)
        if p.mn.startswith("v_dot") and (c.valu or c.mfma or c.vmem or c.ds) and isv(p.w) & (c.r | c.w):
            same_c = c.mn == p.mn and not (isv(p.w) & (regs(c.ops[1]) | regs(c.ops[2])))
            if not same_c: n = max(n, 3)
    if p.mfma:
        big = 12 if p.passes == 8 else 8
        if c.mfma:
            if p.w & c.srcab: n = max(n, big)
            if p.w & c.srcc and not (p.w == c.srcc and p.passes == c.passes): n = max(n, big - 2)
            if p.w & c.w and not (p.w & c.srcc): n = max(n, big - 2)
        elif (c.valu or c.vmem or c.ds) and p.w & (c.r | c.w): n = max(n, big)
        if c.valu and p.srcc & c.w: n = max(n, 7 if p.passes == 8 else 3)
    if p.vmem and p.stdata and (c.valu or c.mfma or c.ds or c.vmem) and p.stdata & c.w: n = max(n, 2)
    if p.salu and ("m0", 0) in p.w and c.vmem and c.dma: n = max(n, 1)
    return n

def fix(lines, verbose=False):
    out, hist, added = [], [], 0
    for ln in lines:
        s = ln.strip()
        if not s or s.startswith((";", ".")) or s.endswith(":"):
            out.append(ln); continue
        c = I(s)
        dist, pad = 0, 0
        for p in reversed(hist):
            if dist >= 12: break
            k = need(p, c) - dist
            if k > pad: pad = k; why = p.text
            dist += p.states
        if pad > 0:
            out.append("    s_nop %d" % (pad - 1)); hist.append(I("s_nop %d" % (pad - 1))); added += pad
            if verbose: print("nop %d before [%s] after [%s]" % (pad, s, why))
        out.append(ln); hist.append(c)
        if len(hist) > 16: hist.pop(0)
    return out, added
```

```python
import hz

class Prog:
    def __init__(self):
        self.items = []
        self.tail = []
        self.nstamp = 0
        self.stamp_names = []
    def __call__(self, s):
        for l in s.split("\n"):
            l = l.strip()
            if l:
                self.items.append(("i", l, None))
    def vm(self, s, tag=None): self.items.append(("vm", s, tag))
    def ds(self, s, tag=None): self.items.append(("ds", s, tag))
    def wvm(self, tag): self.items.append(("wvm", None, tag))
    def wds(self, tag): self.items.append(("wds", None, tag))
    def add(self, items): self.items.extend(items)
    def out(self, s):
        for l in s.split("\n"):
            l = l.strip()
            if l:
                self.tail.append(l)
    def resolve(self):
        lines = []
        seq = {"vm": [], "ds": []}
        done = {"vm": 0, "ds": 0}
        for kind, text, tag in self.items:
            if kind in ("vm", "ds"):
                seq[kind].append(tag); lines.append(text)
            elif kind in ("wvm", "wds"):
                k = kind[1:]
                idx = max(i for i, t in enumerate(seq[k]) if t == tag)
                if idx < done[k]:
                    continue
                n = len(seq[k]) - 1 - idx
                lim = 63 if k == "vm" else 15
                n = min(n, lim)
                done[k] = len(seq[k]) - n
                lines.append("s_waitcnt %s(%d)" % ("vmcnt" if k == "vm" else "lgkmcnt", n))
            else:
                lines.append(text)
                if text.startswith("s_waitcnt") and "; cond" not in text:
                    if "vmcnt(0)" in text: done["vm"] = len(seq["vm"])
                    if "lgkmcnt(0)" in text: done["ds"] = len(seq["ds"])
        return lines

def fmt(lines):
    return [l if (l.endswith(":") or l.startswith(".")) else "    " + l for l in lines]

def weave(main, fill, start=0, end=None):
    end = len(main) if end is None else end
    n = end - start
    out, k = [], 0
    for i, m in enumerate(main):
        out.append(list(m))
        if start <= i < end:
            upto = (len(fill) * (i - start + 1) + n - 1) // n if i < end - 1 else len(fill)
            while k < upto:
                out[-1].extend(fill[k]); k += 1
    return out

def flat(groups):
    return [x for g in groups for x in g]
def I(s): return [("i", l.strip(), None) for l in s.split("\n") if l.strip()]
def VM(s, tag=None): return [("vm", s, tag)]
def DS(s, tag=None): return [("ds", s, tag)]
def WVM(tag): return [("wvm", None, tag)]
def WDS(tag): return [("wds", None, tag)]
```

```python
import sys
import hz
from prog import *
from asmlib import NAME, HEAD, entry, kd

EPOCH, FLAGA, FLAGB, MOD = 0, 0x1000, 0x8000, 0xC000
KVT, YY, H2, X2, HH, WS_SIZE = 0x200000, 0x400000, 0x600000, 0x800000, 0xA00000, 0x1200000
STAMP_OFF = 32 << 20
STG, R0 = 0, 114688
UL, EX, BS = R0, R0 + 9472, R0
KL = EX
UPAR, UCH, KCH, BSP = 2368, 4736, 4160, 928
TILE = 28672
RED, REDW, REDP = 0, 8704, 272
LDS_BYTES = 163840
OOB = 0x80000000
SPIN = 1 << 16
WS, SK, SV, SSH, SSK, SQ, SG, SU, SD, SO, SC = ("s[%d:%d]" % (b, b + 3) for b in (4, 8, 12, 16, 20, 24, 28, 32, 36, 40, 44))

def v(b, n=1): return "v%d" % b if n == 1 else "v[%d:%d]" % (b, b + n - 1)
def ar(b, n=1): return "a%d" % b if n == 1 else "a[%d:%d]" % (b, b + n - 1)

class Gen:
    def __init__(self, upto="all", stamps=False):
        self.p = Prog()
        self.upto, self.stamps = upto, stamps
        self.names = []

    def stamp(self, name):
        if not self.stamps: return []
        if name not in self.names:
            self.names.append(name)
        i = self.names.index(name)
        b = 100 if i == 0 else 68 + 2 * (i - 1)
        assert b <= 100 and (i == 0 or b < 100)
        return I("s_memrealtime s[%d:%d]" % (b, b + 1))

    def unpack(self, dst, src):
        return I("v_lshlrev_b32 %s, 16, %s\nv_and_b32 %s, 0xffff0000, %s" % (v(dst), v(src), v(dst + 1), v(src)))

    def sentinel_max(self, dst, regs):
        regs = list(regs)
        out = I("v_max3_u32 %s, %s, %s, %s" % (v(dst), v(regs[0]), v(regs[1]), v(regs[2])))
        regs = regs[3:]
        while len(regs) >= 2:
            out += I("v_max3_u32 %s, %s, %s, %s" % (v(dst), v(dst), v(regs[0]), v(regs[1]))); regs = regs[2:]
        if regs:
            out += I("v_max_u32 %s, %s, %s" % (v(dst), v(dst), v(regs[0])))
        return out

    def spin(self, name, reload_lines, check_lines):
        p = self.p
        p("\n".join(check_lines))
        p("s_cbranch_vccnz L_%s_retry" % name)
        p("L_%s_ok:" % name)
        p.out("L_%s_retry:" % name)
        p.out("s_mov_b32 s67, 0")
        p.out("L_%s_loop:" % name)
        p.out("\n".join(reload_lines))
        p.out("s_waitcnt vmcnt(0) lgkmcnt(0)")
        p.out("\n".join(check_lines))
        p.out("s_cbranch_vccz L_%s_ok" % name)
        p.out("s_add_u32 s67, s67, 1")
        p.out("s_cmp_lt_u32 s67, %d" % SPIN)
        p.out("s_cbranch_scc1 L_%s_loop" % name)
        p.out("s_branch L_%s_ok" % name)

    def prologue(self):
        p = self.p
        p.add(self.stamp("start"))
        p("""
        s_cmp_ge_u32 s2, 256
        s_cbranch_scc1 L_end
        s_load_dwordx2 s[4:5], s[0:1], 112
        s_load_dwordx16 s[56:71], s[0:1], 0
        s_load_dwordx8 s[72:79], s[0:1], 64
        s_load_dwordx2 s[40:41], s[0:1], 96
        s_getpc_b64 s[44:45]
        s_and_b32 s44, s44, 0xffffff00
        s_mov_b32 s46, L_code_end-%s_kernel
        s_mov_b32 s47, 0x20000
        v_lshlrev_b32 v2, 7, v0
        """ % NAME)
        p.vm("buffer_load_dword v3, v2, %s, 0 offen" % SC, "code")
        p("""
        v_and_b32 v1, 63, v0
        v_lshrrev_b32 v2, 6, v0
        s_and_b32 s52, s2, 7
        s_lshr_b32 s53, s2, 3
        v_readfirstlane_b32 s3, v2
        s_mul_i32 s54, s53, 37
        s_lshr_b32 s54, s54, 8
        s_mul_i32 s55, s54, 7
        s_sub_u32 s55, s53, s55
        s_mov_b32 s6, %d
        s_mov_b32 s7, 0x20000
        """ % WS_SIZE)
        for b, sz in ((8, 1835008), (12, 1835008), (16, 3584), (20, 1835008), (24, 1835008), (28, 1605632),
                      (32, 1605632), (36, 1605632), (40, 1835008)):
            p("s_mov_b32 s%d, %d\ns_mov_b32 s%d, 0x20000" % (b + 2, sz, b + 3))
        for i in range(4):
            p("v_mov_b32 v%d, -1" % (120 + i))
        p("""
        s_and_b32 s48, s53, 7
        s_lshl_b32 s48, s48, 5
        s_lshr_b32 s49, s53, 3
        s_lshl_b32 s49, s49, 2
        s_add_u32 s48, s48, s49
        s_lshl_b32 s49, s52, 8
        s_add_u32 s48, s48, s49
        s_lshr_b32 s49, s3, 1
        s_lshl_b32 s49, s49, 4
        s_add_u32 s48, s48, s49
        s_and_b32 s49, s3, 1
        s_lshl_b32 s49, s49, 1
        s_add_u32 s48, s48, s49
        v_lshlrev_b32 v11, 4, v1
        v_mov_b32 v23, 0
        v_lshrrev_b32 v2, 5, v1
        v_add_u32 v2, s48, v2
        v_and_b32 v4, 31, v1
        v_bfe_u32 v5, v2, 1, 3
        v_mul_u32_u24 v2, 896, v2
        v_xor_b32 v5, v5, v4
        v_lshlrev_b32 v24, 4, v4
        v_lshl_add_u32 v26, v4, 4, v2
        v_lshl_add_u32 v28, v5, 4, v2
        v_cmp_gt_u32 vcc, 24, v4
        v_mov_b32 v5, 0x%x
        v_add_u32 v25, 512, v24
        v_add_u32 v27, 512, v26
        v_add_u32 v29, 512, v28
        v_cndmask_b32 v25, v5, v25, vcc
        v_cndmask_b32 v27, v5, v27, vcc
        v_cndmask_b32 v29, v5, v29, vcc
        """ % OOB)
        p("s_cmp_ge_u32 s53, 28")
        p("s_cbranch_scc1 L_helper")

    def ptr_moves(self, emit):
        emit("""
        s_waitcnt lgkmcnt(0)
        s_load_dwordx2 s[50:51], s[4:5], %d
        s_mov_b64 s[8:9], s[58:59]
        s_mov_b64 s[12:13], s[60:61]
        s_mov_b64 s[24:25], s[56:57]
        s_mov_b64 s[28:29], s[70:71]
        s_mov_b64 s[32:33], s[72:73]
        s_mov_b64 s[36:37], s[74:75]
        """ % EPOCH)

    def b_clears_and_x(self, vm, emit):
        vm("buffer_load_dwordx4 v[112:115], v26, %s, 0 offen" % SQ, "x")
        vm("buffer_load_dwordx4 v[116:119], v27, %s, 0 offen" % SQ, "x")
        emit("s_mov_b32 s57, %d\ns_mov_b32 s58, %d" % (H2, X2))
        vm("buffer_store_dwordx4 v[120:123], v28, %s, s57 offen sc1" % WS, "clr2")
        vm("buffer_store_dwordx4 v[120:123], v29, %s, s57 offen sc1" % WS, "clr2")
        vm("buffer_store_dwordx4 v[120:123], v26, %s, s58 offen sc1" % WS, "clr2")
        vm("buffer_store_dwordx4 v[120:123], v27, %s, s58 offen sc1" % WS, "clr2")

    def wgu_dma(self, batch):
        g = []
        for ks in range(14):
            for X in range(2):
                pre = []
                if ks == 0 and X == 0:
                    pre += I("s_lshl_b32 s60, s3, 11\ns_add_u32 m0, s60, %d\ns_mov_b32 s59, %d" % (STG, batch * 14 * 57344))
                elif X == 0:
                    pre += I("s_add_u32 m0, m0, %d\ns_add_u32 s59, s59, 57344" % (8192 - 1024))
                else:
                    pre += I("s_add_u32 m0, m0, 1024")
                g.append(pre + VM("buffer_load_dwordx4 v20, %s, s59 offen lds" % (SG, SU)[X], "wgu%d" % batch))
        return g

    def wgu_tr(self, batch):
        g = []
        for ks in range(14):
            for X in range(2):
                for i in range(2):
                    off = (ks % 7) * 8192 + i * 2048 + X * 1024
                    g.append(DS("ds_read_b64_tr_b16 %s, %s offset:%d" % (
                        ar(8 * (14 * batch + ks) + 4 * X + 2 * i, 2), v(21 + ks // 7), off), "wtr%d" % batch))
        return g

    def p1(self):
        p = self.p
        p("""
        s_lshl_b32 s48, s52, 2
        s_add_u32 s48, s48, s54
        v_lshrrev_b32 v4, 3, v1
        v_and_b32 v5, 7, v1
        s_lshl_b32 s49, s3, 3
        v_add_u32 v5, s49, v5
        v_mul_u32_u24 v6, %d, v4
        v_lshl_add_u32 v6, v5, 2, v6
        s_mul_i32 s49, s48, %d
        s_lshl_b32 s64, s55, 7
        s_add_u32 s49, s49, s64
        v_add_u32 v6, s49, v6
        v_subrev_u32 v7, %d, v6
        v_cmp_gt_i32 vcc, 0, v7
        v_mov_b32 v8, 0x%x
        v_lshlrev_b32 v9, 13, v5
        v_cndmask_b32 v7, v7, v8, vcc
        v_lshl_add_u32 v9, v4, 4, v9
        s_lshl_b32 s49, s55, 18
        s_lshl_b32 s65, s48, 7
        s_add_u32 s49, s49, s65
        s_add_u32 s49, s49, %d
        v_add_u32 v9, s49, v9
        v_add_u32 v10, 4096, v9
        v_lshlrev_b32 v8, 4, v5
        s_lshl_b32 s49, s55, 9
        v_add_u32 v8, s49, v8
        """.replace("s64", "s46").replace("s65", "s46") % (8 * 896, 64 * 896, 3 * 896, OOB, KVT))
        self.ptr_moves(p)
        p("s_mov_b64 s[16:17], s[62:63]\ns_mov_b64 s[20:21], s[64:65]")
        p("s_mul_i32 s56, s52, 28\ns_add_u32 s56, s56, s53\ns_lshl_b32 s57, s56, 2")
        p("s_load_dword s49, s[66:67], s57")
        p.vm("buffer_store_dwordx4 v[120:123], v9, %s, 0 offen sc1" % WS, "clr1")
        p.vm("buffer_store_dwordx4 v[120:123], v10, %s, 0 offen sc1" % WS, "clr1")
        p("s_movk_i32 s57, 4480")
        p.vm("buffer_load_dwordx4 v[52:55], v8, %s, 0 offen" % SSH, "sh")
        for r in range(3):
            p.vm("buffer_load_dword v%d, v7, %s, 0 offen offset:%d" % (32 + r, SK, 896 * r), "k")
        for srd, base, tag in ((SK, 35, "k"), (SV, 44, "v")):
            for r in range(8):
                p.vm("buffer_load_dword v%d, v6, %s, %s offen offset:%d" % (
                    base + r, srd, "0" if r < 5 else "s57", 896 * (r % 5)), tag)
        p("""
        s_lshl_b32 s57, s56, 13
        s_lshl_b32 s58, s3, 11
        s_add_u32 s57, s57, s58
        s_lshr_b32 s58, s3, 1
        s_mul_i32 s58, s58, %d
        s_and_b32 s59, s3, 1
        s_lshl_b32 s59, s59, 11
        s_add_u32 s58, s58, s59
        s_add_u32 m0, s58, %d
        """ % (KCH, KL + 32))
        p.vm("buffer_load_dwordx4 v11, %s, s57 offen lds" % SSK, "K")
        p.vm("buffer_load_dwordx4 v11, %s, s57 offen offset:1024 lds" % SSK, "K")
        self.b_clears_and_x(p.vm, p)
        p("""
        s_lshl_b32 s57, s56, 13
        s_lshl_b32 s58, s3, 10
        s_add_u32 s57, s57, s58
        s_add_u32 s57, s57, %d
        v_add_u32 v12, s57, v11
        v_add_u32 v13, 4096, v12
        """ % YY)
        p.vm("buffer_store_dwordx4 v[120:123], v12, %s, 0 offen sc1" % WS, "clr2")
        p.vm("buffer_store_dwordx4 v[120:123], v13, %s, 0 offen sc1" % WS, "clr2")
        p("""
        v_mov_b32 v104, 0
        v_mov_b32 v105, 0
        v_mov_b32 v106, 0
        v_mov_b32 v107, 0
        s_mul_i32 s57, s3, %d
        s_add_u32 s57, s57, %d
        v_and_b32 v14, 15, v1
        v_lshlrev_b32 v14, 4, v14
        v_add_u32 v14, s57, v14
        s_lshr_b32 s57, s3, 1
        s_mul_i32 s57, s57, %d
        s_add_u32 s57, s57, %d
        v_and_b32 v15, 1, v1
        v_lshlrev_b32 v15, 4, v15
        v_add_u32 v15, s57, v15
        """ % (UPAR, UL, KCH, KL))
        p.ds("ds_write_b128 v14, v[104:107]")
        p.ds("ds_write_b128 v15, v[104:107]")
        p("""
        s_and_b32 s57, s52, 1
        s_mul_i32 s57, s57, 7
        s_add_u32 s57, s57, s55
        s_lshl_b32 s57, s57, 8
        s_mul_i32 s58, s3, %d
        s_add_u32 s57, s57, s58
        v_bfe_u32 v14, v1, 2, 2
        v_mul_u32_u24 v20, 3584, v14
        v_lshrrev_b32 v15, 4, v1
        v_lshl_add_u32 v20, v15, 6, v20
        v_and_b32 v15, 3, v1
        v_lshl_add_u32 v20, v15, 4, v20
        v_add_u32 v20, s57, v20
        v_lshlrev_b32 v21, 6, v14
        v_lshl_add_u32 v21, v15, 3, v21
        v_bfe_u32 v15, v1, 4, 1
        v_lshl_add_u32 v21, v15, 5, v21
        v_mov_b32 v23, v21
        v_lshrrev_b32 v15, 5, v1
        v_lshl_add_u32 v21, v15, 12, v21
        v_lshl_add_u32 v23, v15, 8, v23
        s_lshl_b32 s57, s3, 8
        s_add_u32 s57, s57, %d
        v_add_u32 v21, s57, v21
        v_add_u32 v22, 57344, v21
        s_mul_i32 s57, s3, 12288
        s_add_u32 s57, s57, %d
        v_add_u32 v23, s57, v23
        """ % (4 * 3584, STG, R0))
        p("""
        s_lshl_b32 s57, s55, 2
        s_add_u32 s57, s57, s3
        s_lshl_b32 s57, s57, 5
        s_add_u32 s57, s57, s48
        s_lshl_b32 s57, s57, 5
        s_add_u32 s57, s57, %d
        v_mov_b32 v14, s57
        s_waitcnt lgkmcnt(0)
        s_add_u32 s50, s50, 1
        s_addc_u32 s51, s51, 0
        v_mov_b32 v124, s50
        v_mov_b32 v125, s51
        """ % FLAGA)
        p.add(self.stamp("issued"))
        p.wvm("clr1")
        p("s_mov_b64 exec, 1")
        p.vm("buffer_store_dwordx2 v[124:125], v14, %s, 0 offen sc1" % WS, "flagA_st")
        p("s_mov_b64 exec, -1")
        p.add(flat(self.wgu_dma(0)))
        p.wvm("sh")
        for jj in range(4):
            lo, hi = 52 + jj // 2, 54 + jj // 2
            if jj % 2 == 0:
                p("v_lshlrev_b32 v%d, 16, v%d\nv_lshlrev_b32 v%d, 16, v%d" % (56 + 2 * jj, lo, 57 + 2 * jj, hi))
            else:
                p("v_and_b32 v%d, 0xffff0000, v%d\nv_and_b32 v%d, 0xffff0000, v%d" % (56 + 2 * jj, lo, 57 + 2 * jj, hi))
        p.wvm("k")
        p.add(self.stamp("k_in"))
        for r in range(11):
            p.add(self.unpack(64 + 2 * r, 32 + r))
        for jj in range(4):
            for r in range(8):
                kk = v(64 + 2 * (r + 3 - jj), 2); acc = v(86 + 2 * r, 2); w = v(56 + 2 * jj, 2)
                p("v_pk_mul_f32 %s, %s, %s" % (acc, kk, w) if jj == 0 else "v_pk_fma_f32 %s, %s, %s, %s" % (acc, kk, w, acc))
        p.wvm("v")
        for r in range(8):
            p.add(self.unpack(64 + 2 * r, 44 + r))
        for r in range(8):
            p("v_pk_mul_f32 %s, %s, %s" % (v(86 + 2 * r, 2), v(86 + 2 * r, 2), v(64 + 2 * r, 2)))
        for e in range(2):
            for m in range(4):
                p("v_cvt_pk_bf16_f32 v%d, v%d, v%d" % (104 + 4 * e + m, 86 + 2 * (7 - 2 * m) + e, 86 + 2 * (6 - 2 * m) + e))
            p.vm("buffer_store_dwordx4 %s, v%d, %s, 0 offen sc1" % (v(104 + 4 * e, 4), 9 + e, WS), "kv_st")
        p.add(self.stamp("kv_st"))

    def conv(self):
        p = self.p
        p("""
        s_lshr_b32 s57, s56, 3
        s_lshl_b32 s57, s57, 10
        s_add_u32 s57, s57, %d
        v_lshrrev_b32 v14, 3, v0
        v_lshlrev_b32 v14, 5, v14
        v_add_u32 v14, s57, v14
        """ % FLAGA)
        ldA = "buffer_load_dwordx2 v[126:127], v14, %s, 0 offen sc1" % WS
        p.vm(ldA, "flagA_ld")
        p.wvm("K")
        p("s_barrier")
        p("""
        v_and_b32 v4, 15, v1
        v_lshrrev_b32 v5, 4, v1
        v_add_u32 v15, 1, v4
        v_and_b32 v16, 1, v15
        v_lshlrev_b32 v16, 4, v16
        v_lshrrev_b32 v15, 1, v15
        v_lshlrev_b32 v15, 2, v15
        v_lshl_add_u32 v15, v5, 6, v15
        s_lshr_b32 s57, s3, 1
        s_mul_i32 s58, s57, %d
        s_and_b32 s59, s3, 1
        s_lshl_b32 s60, s59, 8
        s_add_u32 s58, s58, s60
        s_add_u32 s58, s58, %d
        v_add_u32 v15, s58, v15
        """ % (KCH, KL))
        def kreads(zp):
            g = []
            for z in range(2):
                for m in range(8):
                    g += DS("ds_read2_b32 %s, v15 offset0:%d offset1:%d" % (
                        v(128 + 32 * zp + 16 * z + 2 * m, 2), 128 * z + 2 * m, 128 * z + 2 * m + 1), "kr%d" % zp)
            g += DS("ds_read2_b32 %s, v15 offset0:16 offset1:144" % v(32 + 2 * zp, 2), "kr%d" % zp)
            if zp < 3: g += I("v_add_u32 v15, 1024, v15")
            return g
        def kfix(zp):
            g = WDS("kr%d" % zp)
            for z in range(2):
                b = 128 + 32 * zp + 16 * z
                for m in range(16):
                    hi = b + m + 1 if m < 15 else 32 + 2 * zp + z
                    g += I("v_alignbit_b32 v%d, v%d, v%d, v16" % (b + m, hi, b + m))
            return g
        p.add(kreads(0)); p.add(kreads(1)); p.add(kfix(0)); p.add(kreads(2)); p.add(kfix(1)); p.add(kreads(3))
        p.add(kfix(2)); p.add(kfix(3))
        p("""
        s_mul_i32 s58, s57, %d
        s_lshl_b32 s60, s59, 7
        s_sub_u32 s58, s58, s60
        s_add_u32 s58, s58, %d
        v_lshlrev_b32 v15, 1, v5
        v_sub_u32 v15, v4, v15
        v_lshlrev_b32 v15, 4, v15
        v_add_u32 v15, s58, v15
        v_and_b32 v16, 1, v0
        v_mul_u32_u24 v16, %d, v16
        v_lshrrev_b32 v17, 1, v0
        v_lshl_add_u32 v16, v17, 4, v16
        v_add_u32 v16, %d, v16
        v_lshrrev_b32 v17, 1, v5
        v_mul_u32_u24 v17, %d, v17
        v_lshl_add_u32 v17, v4, 4, v17
        v_and_b32 v18, 1, v5
        v_lshlrev_b32 v18, 3, v18
        v_sub_u32 v17, v17, v18
        s_lshl_b32 s58, s3, 8
        s_add_u32 s58, s58, %d
        v_add_u32 v17, s58, v17
        s_lshl_b32 s58, s3, 10
        s_add_u32 s58, s58, %d
        v_add_u32 v18, s58, v11
        s_lshl_b32 s58, s3, 12
        s_add_u32 s58, s58, %d
        v_add_u32 v19, s58, v11
        s_lshl_b32 s57, s56, 13
        s_add_u32 s57, s57, %d
        s_add_u32 s58, s57, 4096
        v_lshlrev_b32 v30, 4, v0
        s_lshl_b32 s62, s49, 16
        s_and_b32 s63, s49, 0xffff0000
        """ % (UCH, UL + 240, UPAR, UL + 256, UPAR, UL + 256 + 8, EX, EX, KVT))
        p.wvm("flagA_ld")
        p.add(self.stamp("flagA"))
        self.spin("fa", [ldA], ["v_cmp_ne_u64 vcc, s[50:51], v[126:127]"])
        ldU = ["buffer_load_dwordx4 v[104:107], v30, %s, s57 offen sc1" % WS,
               "buffer_load_dwordx4 v[108:111], v30, %s, s58 offen sc1" % WS]
        for l in ldU: p.vm(l, "u")
        p("s_barrier")
        p("""
        s_cmp_lg_u32 s3, 0
        s_cbranch_scc1 L_nofb
        s_lshl_b32 s59, s2, 5
        s_add_u32 s59, s59, %d
        v_mov_b32 v14, s59
        s_mov_b64 exec, 1
        buffer_store_dwordx2 v[124:125], v14, %s, 0 offen sc1
        s_mov_b64 exec, -1
        L_nofb:
        """ % (FLAGB, WS))
        p.add(flat(self.wgu_tr(0)))
        p("s_waitcnt vmcnt(0)")
        chk = [x[1] for x in self.sentinel_max(31, range(104, 112))] + ["v_cmp_eq_u32 vcc, -1, v31"]
        self.spin("u", ldU, chk)
        p.add(self.stamp("u_in"))
        p.ds("ds_write_b128 v16, v[104:107]")
        p.ds("ds_write_b128 v16, v[108:111] offset:%d" % UCH)
        p("s_waitcnt lgkmcnt(0)\ns_barrier")
        def bread(tau):
            g = []
            for f in range(4):
                off = ((1 - f) & 1) * UPAR + 256 * tau + (16 if f < 2 else 0)
                g.append(DS("ds_read_b128 %s, v15 offset:%d" % (ar(128 + 16 * tau + 4 * f, 4), off), "b%d" % tau))
            return g
        def mf(T):
            g = []
            first = True
            for z1 in range(T, -1, -1):
                for f in range(4):
                    pre = WDS("b%d" % T) if (z1 == 0 and f == 0) else []
                    g.append(pre + I("v_mfma_f32_16x16x32_bf16 %s, %s, %s, %s" % (
                        v(32 + 4 * T, 4), v(128 + 16 * z1 + 4 * f, 4), ar(128 + 16 * (T - z1) + 4 * f, 4),
                        "0" if first else v(32 + 4 * T, 4))))
                    first = False
            return g
        def pw(T): return [DS("ds_write_b128 v18, %s offset:%d" % (v(32 + 4 * T, 4), 4096 * T), "pw%d" % T)]
        def du(half):
            g = [DS("ds_read_b64 %s, v17 offset:%d" % (v(80 + 2 * c, 2), c * UCH + 1024 * half), "du%d" % half) for c in range(2)]
            b = 64 + 8 * half
            first = True
            for c in range(2):
                for r in range(4):
                    src = 80 + 2 * c + (1 - r // 2)
                    op = "v_and_b32 v%d, 0xffff0000, v%d" if r % 2 == 0 else "v_lshlrev_b32 v%d, 16, v%d"
                    g.append((WDS("du%d" % half) if first else []) + I(op % (b + 4 * c + r, src)))
                    first = False
            for c in range(2):
                for r in range(4):
                    g.append(I("v_mul_f32 v%d, s%d, v%d" % (b + 4 * c + r, 62 + c, b + 4 * c + r)))
            return g
        def fin(half):
            g = [DS("ds_read_b128 %s, v19 offset:%d" % (v(80 + 4 * w, 4), 16384 * half + 1024 * w), "pr%d_%d" % (half, w)) for w in range(4)]
            b = 64 + 8 * half
            for w in range(4):
                c = w >> 1
                for q in range(2):
                    g.append((WDS("pr%d_%d" % (half, w)) if q == 0 else []) + I("v_pk_add_f32 %s, %s, %s" % (
                        v(b + 4 * c + 2 * q, 2), v(b + 4 * c + 2 * q, 2), v(80 + 4 * w + 2 * q, 2))))
            for r in range(4):
                g.append(I("v_cvt_pk_bf16_f32 v%d, v%d, v%d" % (96 + 4 * half + r, b + r, b + 4 + r)))
            return g
        hhclr = [I("""
        s_lshr_b32 s57, s52, 1
        s_lshl_b32 s57, s57, 2
        s_add_u32 s57, s57, s54
        s_mul_i32 s61, s57, %d
        s_and_b32 s58, s52, 1
        s_mul_i32 s58, s58, 7
        s_add_u32 s58, s58, s55
        s_lshl_b32 s58, s58, 13
        s_add_u32 s61, s61, s58
        s_lshl_b32 s58, s3, 11
        s_add_u32 s61, s61, s58
        s_add_u32 s61, s61, %d
        s_mov_b32 s57, s61""" % (4 * 112 * 1024, HH))]
        for t in range(4):
            hhclr.append(VM("buffer_store_dwordx4 v[120:123], v11, %s, s57 offen sc1" % WS, "clr3"))
            hhclr.append(VM("buffer_store_dwordx4 v[120:123], v11, %s, s57 offen offset:1024 sc1" % WS, "clr3")
                         + (I("s_add_u32 s57, s57, %d" % (112 * 1024)) if t < 3 else []))
        p.add(flat(bread(0) + bread(1)))
        M = [mf(T) for T in range(8)]
        M[0] = weave(M[0], bread(2))
        M[1] = weave(M[1], bread(3) + hhclr[:1])
        M[2] = weave(M[2], bread(4) + pw(0) + hhclr[1:4])
        M[3] = weave(M[3], bread(5) + hhclr[4:] + pw(1))
        dma = self.wgu_dma(1)
        M[4] = weave(weave(M[4], bread(6) + pw(2) + du(0)), dma[:5])
        M[4][12] += pw(3)[0]
        M[5] = weave(weave(M[5], bread(7) + du(1)), dma[5:11])
        M[5][12] += pw(4)[0]
        M[5][-1] += WDS("pw3") + I("s_barrier")
        M[6] = weave(weave(M[6], fin(0)), dma[11:19])
        M[6][12] += pw(5)[0]
        ldB = "buffer_load_dwordx2 v[126:127], v14, %s, 0 offen sc1" % WS
        fb = [I("v_lshlrev_b32 v14, 5, v0\nv_add_u32 v14, %d, v14" % FLAGB) + VM(ldB, "flagB_ld")]
        M[7] = weave(M[7], dma[19:] + fb, 0, 30)
        M[7][12] += pw(6)[0]
        for T in range(8): p.add(flat(M[T]))
        p.add(pw(7)[0])
        p.wvm("clr3")
        p("s_waitcnt lgkmcnt(0)\ns_barrier")
        p.add(self.stamp("conv"))
        p.vm("buffer_store_dwordx4 v[96:99], v12, %s, 0 offen sc1" % WS, "yy_st")
        p.add(flat(fin(1)))
        p.vm("buffer_store_dwordx4 v[100:103], v13, %s, 0 offen sc1" % WS, "yy_st")
        p.add(self.stamp("yy_st"))
        p.wvm("flagB_ld")
        self.ldB = ldB

    def helper(self):
        o = self.p.out
        o("L_helper:")
        self.ptr_moves(o)
        o("""
        s_mov_b64 s[16:17], s[76:77]
        s_mov_b64 s[20:21], s[78:79]
        s_mov_b32 s18, 896
        s_mov_b32 s22, 2408448
        s_lshl_b32 s56, s52, 2
        s_add_u32 s56, s56, s53
        s_sub_u32 s56, s56, 28
        v_lshlrev_b32 v4, 2, v0
        buffer_load_dword v5, v4, %s, 0 offen
        """ % SSH)
        self.b_clears_and_x(lambda s, t: o(s), o)
        o("""
        s_cmp_ge_u32 s56, 28
        s_cbranch_scc1 L_h_nomod
        v_lshrrev_b32 v6, 4, v0
        v_and_b32 v7, 15, v0
        v_mul_u32_u24 v8, 5376, v6
        v_mul_u32_u24 v9, 12, v7
        s_mul_i32 s57, s56, 192
        v_add3_u32 v8, v8, v9, s57
        s_mov_b32 s57, 0
        """)
        for i in range(28):
            o("buffer_load_dwordx3 %s, v8, %s, s57 offen" % (v(128 + 4 * i, 3), SSK))
            if i < 27: o("s_add_u32 s57, s57, %d" % (16 * 5376))
        o("s_waitcnt vmcnt(34)")
        o("v_lshlrev_b32 v10, 16, v5\nv_and_b32 v11, 0xffff0000, v5")
        for r in (10, 11):
            o("""
            v_mul_f32 v12, 0xbfb8aa3b, v%d
            v_exp_f32 v12, v12
            s_nop 0
            v_add_f32 v12, 1.0, v12
            v_rcp_f32 v12, v12
            s_nop 0
            v_mul_f32 v%d, v%d, v12
            """ % (r, r, r))
        o("""
        v_cvt_pk_bf16_f32 v5, v10, v11
        v_lshlrev_b32 v10, 16, v5
        v_and_b32 v11, 0xffff0000, v5
        v_and_b32 v12, 7, v0
        v_lshlrev_b32 v12, 8, v12
        v_lshrrev_b32 v13, 3, v0
        v_lshl_add_u32 v12, v13, 2, v12
        ds_write2_b32 v12, v10, v11 offset0:0 offset1:32
        v_lshlrev_b32 v12, 7, v6
        s_waitcnt lgkmcnt(0)
        s_barrier
        """)
        for q in range(7):
            o("ds_read_b128 %s, v12 offset:%d" % (v(32 + 4 * q, 4), 16 * q))
        o("s_waitcnt lgkmcnt(0)")
        for i in range(28):
            o("s_waitcnt vmcnt(%d)" % (27 - i))
            for m in range(3):
                o("v_lshlrev_b32 v%d, 16, v%d\nv_and_b32 v%d, 0xffff0000, v%d" % (64 + 2 * m, 128 + 4 * i + m, 65 + 2 * m, 128 + 4 * i + m))
            sel = "op_sel:[0,%d] op_sel_hi:[1,%d]" % (i & 1, i & 1) if i == 0 else "op_sel:[0,%d,0] op_sel_hi:[1,%d,1]" % (i & 1, i & 1)
            for m in range(3):
                if i == 0:
                    o("v_pk_mul_f32 %s, %s, %s %s" % (v(72 + 2 * m, 2), v(64 + 2 * m, 2), v(32 + (i & ~1), 2), sel))
                else:
                    o("v_pk_fma_f32 %s, %s, %s, %s %s" % (v(72 + 2 * m, 2), v(64 + 2 * m, 2), v(32 + (i & ~1), 2), v(72 + 2 * m, 2), sel))
        o("""
        v_mul_u32_u24 v12, 384, v6
        v_mul_u32_u24 v13, 24, v7
        v_add_u32 v12, v12, v13
        ds_write_b64 v12, v[72:73] offset:4096
        ds_write_b64 v12, v[74:75] offset:4104
        ds_write_b64 v12, v[76:77] offset:4112
        v_min_u32 v12, 47, v0
        v_lshlrev_b32 v13, 2, v12
        v_lshlrev_b32 v12, 3, v12
        s_waitcnt lgkmcnt(0)
        s_barrier
        """)
        for q in range(16):
            o("ds_read_b64 %s, v12 offset:%d" % (v(32 + 2 * q, 2), 4096 + 384 * q))
            if q == 7: o("s_waitcnt lgkmcnt(0)")
        o("s_waitcnt lgkmcnt(0)")
        for q in range(1, 16):
            o("v_pk_add_f32 v[32:33], v[32:33], %s" % v(32 + 2 * q, 2))
        o("""
        v_cvt_pk_bf16_f32 v32, v32, v33
        s_mul_i32 s57, s56, 192
        s_add_u32 s57, s57, %d
        s_cmp_lg_u32 s3, 0
        s_cbranch_scc1 L_h_nomod
        buffer_store_dword v32, v13, %s, s57 offen sc1
        L_h_nomod:
        s_waitcnt vmcnt(0) lgkmcnt(0)
        s_barrier
        s_add_u32 s50, s50, 1
        s_addc_u32 s51, s51, 0
        v_mov_b32 v124, s50
        v_mov_b32 v125, s51
        s_cmp_lg_u32 s3, 0
        s_cbranch_scc1 L_h_nofb
        s_lshl_b32 s59, s2, 5
        s_add_u32 s59, s59, %d
        v_mov_b32 v14, s59
        s_mov_b64 exec, 1
        buffer_store_dwordx2 v[124:125], v14, %s, 0 offen sc1
        s_mov_b64 exec, -1
        L_h_nofb:
        v_lshlrev_b32 v14, 5, v0
        v_add_u32 v14, %d, v14
        %s
        s_waitcnt vmcnt(0)
        s_branch L_stageB
        """ % (MOD, WS, FLAGB, WS, FLAGB, self.ldB))

    def ln_stats(self, x, S, Q, T0):
        g = I("v_pk_add_f32 %s, %s, %s" % (v(S, 2), v(x, 2), v(x + 2, 2)))
        g += I("v_pk_mul_f32 %s, %s, %s" % (v(Q, 2), v(x, 2), v(x, 2)))
        g += I("v_pk_fma_f32 %s, %s, %s, %s" % (v(Q, 2), v(x + 2, 2), v(x + 2, 2), v(Q, 2)))
        for i in range(2, 8):
            g += I("v_pk_add_f32 %s, %s, %s" % (v(S, 2), v(S, 2), v(x + 2 * i, 2)))
            g += I("v_pk_fma_f32 %s, %s, %s, %s" % (v(Q, 2), v(x + 2 * i, 2), v(x + 2 * i, 2), v(Q, 2)))
        dpp = " row_mask:0xf bank_mask:0xf"
        g += I("""
        v_add_f32 {S}, {S}, {S1}
        v_add_f32 {Q}, {Q}, {Q1}
        v_permlane16_swap_b32 {S}, {Q}
        v_add_f32 {S}, {S}, {Q}
        v_add_f32_dpp {S}, {S}, {S} quad_perm:[1,0,3,2]{d}
        v_add_f32_dpp {S}, {S}, {S} quad_perm:[2,3,0,1]{d}
        v_add_f32_dpp {S}, {S}, {S} row_half_mirror{d}
        v_add_f32_dpp {S}, {S}, {S} row_mirror{d}
        v_mul_f32 {S}, 0x3b124925, {S}
        v_mov_b32 {Q}, {S}
        v_permlane16_swap_b32 {S}, {Q}
        v_fma_f32 {Q}, -{S}, {S}, {Q}
        v_max_f32 {Q}, 0, {Q}
        v_add_f32 {Q}, 0x3727c5ac, {Q}
        v_rsq_f32 {Q}, {Q}
        v_mul_f32 {S1}, {S}, {Q}
        v_mov_b32 {S}, {Q}
        v_sub_f32 {S1}, 0, {S1}
        """.format(S=v(S), S1=v(S + 1), Q=v(Q), Q1=v(Q + 1), d=dpp))
        return g

    def stageB(self):
        p = self.p
        p("L_stageB:")
        self.spin("fb", [self.ldB], ["v_cmp_ne_u64 vcc, s[50:51], v[126:127]"])
        p("s_barrier")
        p.add(self.stamp("flagB"))
        for vec in range(5):
            p("s_mov_b32 s57, %d" % (MOD + 896 * vec))
            for h in range(2):
                p.vm("buffer_load_dwordx4 %s, v%d, %s, s57 offen sc1" % (v(128 + 8 * vec + 4 * h, 4), 24 + h, WS), "mod")
        p("""
        s_cmp_lg_u32 s2, 255
        s_cbranch_scc1 L_noep
        v_mov_b32 v14, %d
        s_mov_b64 exec, 1
        buffer_store_dwordx2 v[124:125], v14, %s, 0 offen sc1
        s_mov_b64 exec, -1
        s_waitcnt vmcnt(0) ; conditional path
        L_noep:
        s_cmp_ge_u32 s53, 28
        s_cbranch_scc1 L_notr
        """ % (EPOCH, WS))
        p.add(flat(self.wgu_tr(1)))
        p("L_notr:")
        for i in range(8):
            p.add(self.unpack(32 + 2 * i, 112 + i))
        p.add(self.ln_stats(32, 64, 66, 68))
        for i in range(8):
            p("v_pk_fma_f32 %s, %s, v[64:65], v[64:65] op_sel:[0,0,1] op_sel_hi:[1,0,1]" % (v(48 + 2 * i, 2), v(32 + 2 * i, 2)))
        p("""
        v_lshrrev_b32 v4, 1, v1
        v_and_b32 v5, 1, v1
        s_mul_i32 s57, s3, 56
        v_add_u32 v4, s57, v4
        v_lshlrev_b32 v14, 13, v4
        v_lshl_add_u32 v14, v5, 4, v14
        v_cmp_gt_u32 vcc, 56, v1
        v_mov_b32 v15, 0x%x
        v_mul_u32_u24 v16, %d, v5
        v_cndmask_b32 v14, v15, v14, vcc
        v_mov_b32 v15, 196
        v_add_u32 v16, %d, v16
        v_cndmask_b32 v4, v15, v4, vcc
        v_lshl_add_u32 v16, v4, 2, v16
        v_mov_b32 v15, 112
        v_cndmask_b32 v15, v15, 0, vcc
        v_add_u32 v18, 112, v16
        v_add_u32 v16, v16, v15
        v_add_u32 v17, %d, v16
        v_add_u32 v19, %d, v18
        s_lshl_b32 s57, s52, 10
        s_lshl_b32 s58, s53, 5
        s_add_u32 s57, s57, s58
        s_add_u32 s57, s57, %d
        s_add_u32 s58, s57, %d
        v_lshrrev_b32 v4, 5, v0
        v_mul_u32_u24 v4, %d, v4
        v_and_b32 v5, 31, v1
        v_lshl_add_u32 v30, v5, 4, v4
        v_min_u32 v5, 23, v5
        v_lshl_add_u32 v31, v5, 4, v4
        v_add_u32 v30, %d, v30
        v_add_u32 v31, %d, v31
        """ % (OOB, 4 * BSP, BS, 2 * BSP, 2 * BSP, YY, 28 * 8192, BSP, BS, BS + 512))
        p.wvm("mod")
        ldY = ["buffer_load_dwordx4 v[104:107], v14, %s, s57 offen sc1" % WS,
               "buffer_load_dwordx4 v[108:111], v14, %s, s58 offen sc1" % WS]
        for l in ldY: p.vm(l, "yy")
        p.add(self.stamp("mod"))
        for vec in range(5):
            for i in range(8):
                p.add(self.unpack(168 + 16 * vec + 2 * i, 128 + 8 * vec + i))
        for b in (184, 232):
            for i in range(8):
                p("v_pk_add_f32 %s, %s, 1.0 op_sel_hi:[1,0]" % (v(b + 2 * i, 2), v(b + 2 * i, 2)))
        for i in range(8):
            p("v_pk_fma_f32 %s, %s, %s, %s" % (v(48 + 2 * i, 2), v(48 + 2 * i, 2), v(184 + 2 * i, 2), v(168 + 2 * i, 2)))
        for i in range(8):
            p("v_pk_mul_f32 %s, %s, %s" % (v(48 + 2 * i, 2), v(48 + 2 * i, 2), v(200 + 2 * i, 2)))
        p.wvm("yy")
        chk = [x[1] for x in self.sentinel_max(15, range(104, 112))] + ["v_cmp_eq_u32 vcc, -1, v15"]
        self.spin("yy", ldY, chk)
        p.add(self.stamp("yy_in"))
        for i in range(2):
            for q in range(2):
                p.ds("ds_write2_b32 v%d, v%d, v%d offset0:0 offset1:%d" % (16 + 2 * i + q, 104 + 4 * i + 2 * q, 105 + 4 * i + 2 * q, BSP // 4))
        p("s_waitcnt lgkmcnt(0)\ns_barrier")
        p.ds("ds_read_b128 v[104:107], v30", "y0")
        p.ds("ds_read_b128 v[108:111], v31", "y1")
        for i in range(8):
            if i % 4 == 0: p.wds("y%d" % (i // 4))
            p.add(self.unpack(80 + 2 * i, 104 + i))
            p("v_pk_fma_f32 %s, %s, %s, %s" % (v(32 + 2 * i, 2), v(48 + 2 * i, 2), v(80 + 2 * i, 2), v(32 + 2 * i, 2)))
        p.add(self.ln_stats(32, 64, 66, 68))
        p("s_mov_b32 s57, %d\ns_mov_b32 s58, %d" % (H2, X2))
        for h in range(2):
            for i in range(4 * h, 4 * h + 4):
                p("v_pk_fma_f32 %s, %s, v[64:65], v[64:65] op_sel:[0,0,1] op_sel_hi:[1,0,1]" % (v(48 + 2 * i, 2), v(32 + 2 * i, 2)))
            for i in range(4 * h, 4 * h + 4):
                p("v_pk_fma_f32 %s, %s, %s, %s" % (v(48 + 2 * i, 2), v(48 + 2 * i, 2), v(232 + 2 * i, 2), v(216 + 2 * i, 2)))
            for i in range(4 * h, 4 * h + 4):
                p("v_cvt_pk_bf16_f32 v%d, v%d, v%d" % (104 + i, 48 + 2 * i, 49 + 2 * i))
            p.vm("buffer_store_dwordx4 %s, v%d, %s, s57 offen sc1" % (v(104 + 4 * h, 4), 28 + h, WS), "h2_st")
        for h in range(2):
            for i in range(4 * h, 4 * h + 4):
                p("v_cvt_pk_bf16_f32 v%d, v%d, v%d" % (112 + i, 32 + 2 * i, 33 + 2 * i))
            p.vm("buffer_store_dwordx4 %s, v%d, %s, s58 offen sc1" % (v(112 + 4 * h, 4), 26 + h, WS), "x2_st")
        p.add(self.stamp("h2_st"))
        p("s_cmp_ge_u32 s53, 28\ns_cbranch_scc1 L_exit")

    def finish(self):
        p = self.p
        p("L_exit:")
        if self.stamps:
            p("""
            s_waitcnt vmcnt(0) lgkmcnt(0)
            s_memrealtime s[64:65]
            s_add_u32 s4, s4, %d
            s_addc_u32 s5, s5, 0
            s_lshl_b32 s57, s2, 2
            s_add_u32 s57, s57, s3
            s_lshl_b32 s57, s57, 7
            v_mov_b32 v2, s57
            s_waitcnt lgkmcnt(0)
            """ % STAMP_OFF)
            regs = [100] + [68 + 2 * i for i in range(len(self.names) - 1)] + [64]
            for i, r in enumerate(regs):
                p("v_mov_b32 v3, s%d" % r)
                p("buffer_store_dword v3, v2, %s, 0 offen offset:%d" % (WS, 4 * i))
        p("L_end:")
        p("s_endpgm")

    def build(self):
        self.prologue()
        self.p1()
        self.conv()
        self.helper()
        self.stageB()
        if self.upto != "B":
            import gen2
            gen2.ffn(self)
        self.finish()
        lines = self.p.resolve() + self.p.tail + ["L_code_end:", "s_endpgm"]
        lines, added = hz.fix(fmt(lines), verbose="-v" in sys.argv)
        name = NAME + "_kernel"
        head = open("cdna_kernels/%s.s.ref" % NAME).read().split("; @launch")[0]
        txt = head + "; @launch grid=(256,1,1) block=(256,1,1) lds=%d\n" % LDS_BYTES + HEAD + entry(name) + "\n".join(lines) + "\n" + kd(name, 512, 102, 256)
        return txt, added

if __name__ == "__main__":
    upto = sys.argv[1] if len(sys.argv) > 1 else "all"
    for stamps, fn in ((False, "k.s"), (True, "k_st.s")):
        g = Gen(upto, stamps)
        txt, added = g.build()
        open(fn, "w").write(txt)
        if stamps: open("k_st.names", "w").write(" ".join(g.names + ["end"]))
        print(fn, "nops added:", added, "lines:", txt.count("\n"))
```

```python
from prog import *
from gen import *
import sys

def ffn(G):
    p, C = G.p, G.cfg
    a1 = I("""
    s_lshr_b32 s57, s52, 1
    s_lshl_b32 s57, s57, 2
    s_add_u32 s57, s57, s54
    s_mul_i32 s62, s57, %d
    s_mul_i32 s63, s3, 7168
    s_add_u32 s62, s62, s63
    s_add_u32 s62, s62, %d
    v_add_u32 v2, s63, v11
    s_lshl_b32 s57, s57, 6
    s_and_b32 s59, s52, 1
    s_mul_i32 s59, s59, 7
    s_add_u32 s59, s59, s55
    s_lshl_b32 s59, s59, 2
    s_add_u32 s59, s59, s3
    s_add_u32 s57, s57, s59
    s_lshl_b32 s57, s57, 5
    s_add_u32 s56, s57, %d
    v_and_b32 v4, 31, v1
    v_lshrrev_b32 v5, 5, v1
    v_bfe_u32 v10, v1, 1, 3
    v_mul_u32_u24 v9, 896, v4
    v_xor_b32 v12, v5, v10
    v_xor_b32 v13, 2, v12
    v_xor_b32 v14, 4, v12
    v_xor_b32 v15, 6, v12
    v_lshl_add_u32 v12, v12, 4, v9
    v_lshl_add_u32 v13, v13, 4, v9
    v_lshl_add_u32 v14, v14, 4, v9
    v_lshl_add_u32 v15, v15, 4, v9
    s_lshl_b32 s57, s52, 3
    s_lshr_b32 s59, s54, 1
    s_lshl_b32 s59, s59, 2
    s_add_u32 s57, s57, s59
    s_and_b32 s59, s54, 1
    s_add_u32 s46, s57, s59
    s_mul_i32 s65, s46, %d
    s_mul_i32 s59, s3, 28672
    s_add_u32 s65, s65, s59
    s_add_u32 s65, s65, %d
    s_mul_i32 s48, s46, %d
    s_mul_i32 s59, s3, %d
    s_add_u32 s48, s48, s59
    s_lshl_b32 s59, s55, 7
    s_add_u32 s48, s48, s59
    v_mov_b32 v16, -1
    v_mov_b32 v17, -1
    v_mov_b32 v18, -1
    v_mov_b32 v19, -1
    """ % (4 * TILE, H2, FLAGD, 112 * 1024, HH, TILE, 8 * 896))
    def h2dma(t, single=False):
        g = []
        for i in range(7):
            pre, imm = [], (0 if single else 1024 * (i % 4))
            if imm == 0: pre = I("s_add_u32 m0, s63, %d\ns_add_u32 s57, s62, %d" % ((t % 2) * TILE + 1024 * i, t * TILE + 1024 * i))
            g.append(pre + VM("buffer_load_dwordx4 v11, %s, s57 offen offset:%d sc1 lds" % (WS, imm), "h2_%d" % t))
        return g
    def verify_items(t, wide=False):
        g = []
        off = (t % 2) * TILE
        rounds = (tuple(range(7)),) if wide else ((0, 1), (2, 3), (4, 5), (6,))
        base = ACC[1] if wide else 24
        for idx in rounds:
            for q, i in enumerate(idx):
                g.append((WVM("h2_%d" % t) if i == 0 else []) + DS("ds_read_b128 %s, v2 offset:%d" % (v(base + 4 * q, 4), off + 1024 * i), "vf%d_%d" % (t, i)))
            for q, i in enumerate(idx):
                b = base + 4 * q
                first = "v_max3_u32 v10, v%d, v%d, v%d\nv_max_u32 v10, v10, v%d" % (b, b + 1, b + 2, b + 3)
                nxt = "v_max3_u32 v10, v10, v%d, v%d\nv_max3_u32 v10, v10, v%d, v%d" % (b, b + 1, b + 2, b + 3)
                g.append(WDS("vf%d_%d" % (t, i)) + I(first if i == 0 else nxt))
        return g
    def plain(items): return ["s_waitcnt lgkmcnt(0)" if x[0] == "wds" else x[1] for x in items if x[0] != "wvm"]
    def verify_branch(t, wide=False):
        cmp_ = ["v_cmp_eq_u32 vcc, -1, v10"]
        return G.spin("h%d" % t, plain(flat(h2dma(t))), plain(flat(verify_items(t, wide))) + cmp_, cmp_)
    wd_dma = G.wd_dma
    def wd_tr(ks, dst=None, tag=None):
        g = []
        for t in range(2):
            kind, b = wd_reg(ks, t) if dst is None else ("v", dst + 4 * t)
            for i in range(2):
                g.append((WVM("wd%d" % ks) if (t == 0 and i == 0) else []) + DS("ds_read_b64_tr_b16 %s, v23 offset:%d" % (
                    rr(kind, b + 2 * i, 2), (ks % 13) * 2048 + i * 1024 + t * 512), tag or "wt%d" % ks))
        return g
    def hread(t, ks):
        return DS("ds_read_b128 %s, v%d offset:%d" % (v(HF + 4 * (ks % 4), 4), 12 + ks % 4, (t % 2) * TILE + 128 * (ks // 4)), "hf%d_%d" % (t, ks))
    def epi1(t):
        A = ACC[t % 2]
        g = []
        for ph in range(2):
            for i in range(8 * ph, 8 * ph + 8):
                g.append(I("v_mul_f32 v%d, v%d, v%d" % (A + i, A + i, A + 16 + i)))
            for i in range(4):
                g.append(I("v_cvt_pk_bf16_f32 v%d, v%d, v%d" % (A + 16 + 4 * ph + i, A + 8 * ph + 2 * i, A + 8 * ph + 2 * i + 1)))
            pre = I("s_add_u32 s59, s61, %d" % (t * 112 * 1024)) if ph == 0 else []
            g.append(pre + VM("buffer_store_dwordx4 %s, v11, %s, s59 offen offset:%d sc1" % (v(A + 16 + 4 * ph, 4), WS, 1024 * ph), "hh_st%d" % t))
        return g
    def hh_clears():
        g = []
        for t in ((3,) if C["use_e"] else (2, 3)):
            g.append(I("s_add_u32 s66, s61, %d" % (t * 112 * 1024)) + VM("buffer_store_dwordx4 v[16:19], v11, %s, s66 offen sc1" % WS, "clr5"))
            g.append(VM("buffer_store_dwordx4 v[16:19], v11, %s, s66 offen offset:1024 sc1" % WS, "clr5"))
        return g
    def hhload(rt, ks):
        sr = ("s60", "s66")[rt]
        pre = I("s_add_u32 %s, s65, %d" % (sr, rt * 2 * 112 * 1024 + 1024 * ks)) if ks % 4 == 0 else []
        return pre + VM("buffer_load_dwordx4 %s, v11, %s, %s offen offset:%d sc1" % (ar(4 * (28 * rt + ks), 4), WS, sr, 1024 * (ks % 4)), "hh%d_%d" % (rt, ks))
    def hhcheck(gq):
        b = 4 * (28 + 4 * gq)
        rd = ["v_accvgpr_read_b32 v%d, a%d" % (16 + i, b + 4 * i + 3) for i in range(4)]
        ck = ["v_max3_u32 v10, v16, v17, v18", "v_max_u32 v10, v10, v19", "v_cmp_eq_u32 vcc, -1, v10"]
        rl = ["s_add_u32 s57, s65, %d" % (2 * 112 * 1024 + 4096 * gq)] + [
            "buffer_load_dwordx4 %s, v11, %s, s57 offen offset:%d sc1" % (ar(b + 4 * i, 4), WS, 1024 * i) for i in range(4)]
        return [WVM("hh1_%d" % (4 * gq + 3)) + I("\n".join(rd[:2])), I("\n".join(rd[2:])), I("\n".join(ck[:2])),
                G.spin("q%d" % gq, rl, rd + ck, ck[2:])]

    n0 = C["wd_w5"] + C["wd_pre"]
    n1 = n0 + C["wd_post"]
    assert n1 <= 13
    p.add(flat(weave(singles(a1), [d for ks in range(C["wd_w5"], n0) for d in wd_dma(ks)])))
    p.add(G.stamp("_w6"))
    p.wvm("h2_st")
    p.add(G.stamp("h2_ack"))
    p.add(flat(h2dma(0)))
    for ks in range(n0, n1): p.add(flat(wd_dma(ks)))
    p.add(G.stamp("_h2req"))
    p.wvm("h2_0")
    p.add(G.stamp("_h2land"))
    p.add(flat(verify_items(0, True)))
    p.add(verify_branch(0, True))
    p.add(G.stamp("_h2ok"))
    p("s_waitcnt lgkmcnt(0)\ns_barrier")
    p.add(G.stamp("h2_in"))
    for ks in range(3): p.add(hread(0, ks))
    e0, e1 = C["epi"]
    S = []
    for t in range(4):
        A = ACC[t % 2]
        for ks in range(28):
            for X in range(2):
                pre = WDS("hf%d_%d" % (t, ks)) if X == 0 else []
                grp = pre + I("v_mfma_f32_32x32x16_bf16 %s, %s, %s, %s" % (
                    v(A + 16 * X, 16), ar(8 * ks + 4 * X, 4), v(HF + 4 * (ks % 4), 4), "0" if ks == 0 else v(A + 16 * X, 16)))
                if X == 0:
                    if ks + 3 < 28: grp += hread(t, ks + 3)
                    elif t < 3:
                        if ks == 25:
                            grp += verify_branch(t + 1) + WDS("hf%d_27" % t) + I("s_barrier")
                        grp += DS("ds_read_b128 %s, v%d offset:%d" % (v(HF + 4 * ((ks + 3) % 4), 4), 12 + (ks + 3) % 4,
                                  ((t + 1) % 2) * TILE), "hf%d_%d" % (t + 1, ks - 25))
                S.append(grp)
    def g2m(rt):
        A = ACC[rt]
        M = []
        for ks in range(28):
            for t in range(2):
                pre = []
                if t == 0:
                    if rt == 0: pre += WVM("hh0_%d" % ks)
                    pre += WDS("wt%d" % ks) if ks < 22 else WDS("wl%d_%d" % (rt, ks))
                kind, b = wd_reg(ks, t) if ks < 22 else ("v", HF + 8 * (ks % 2) + 4 * t)
                grp = pre + I("v_mfma_f32_32x32x16_bf16 %s, %s, %s, %s" % (
                    v(A + 16 * t, 16), rr(kind, b, 4), ar(4 * (28 * rt + ks), 4), "0" if ks == 0 else v(A + 16 * t, 16)))
                if t == 1 and 22 <= ks + 2 < 28:
                    grp += flat(wd_tr(ks + 2, HF + 8 * (ks % 2), "wl%d_%d" % (rt, ks + 2)))
                M.append(grp)
        return M
    def nan_net():
        o = p.out
        o("""
        L_g2_nan:
        s_mov_b32 s67, 0
        s_add_u32 s57, s65, {base}
        s_add_u32 s58, s57, 28672
        L_g2_next:
        buffer_load_dwordx4 v[16:19], v11, {ws}, s57 offen sc1
        s_waitcnt vmcnt(0) lgkmcnt(0)
        v_max3_u32 v10, v16, v17, v18
        v_max_u32 v10, v10, v19
        v_cmp_eq_u32 vcc, -1, v10
        s_cbranch_vccz L_g2_adv
        s_add_u32 s67, s67, 1
        s_cmp_lt_u32 s67, {spin}
        s_cbranch_scc1 L_g2_next
        L_g2_adv:
        s_add_u32 s57, s57, 1024
        s_cmp_lt_u32 s57, s58
        s_cbranch_scc1 L_g2_next
        """.format(base=2 * 112 * 1024, ws=WS, spin=SPIN))
        for ks in range(28): o(txt(hhload(1, ks)))
        o("s_waitcnt vmcnt(0)")
        o("\n".join(plain(flat(g2m(1)))))
        o("s_nop 15\ns_branch L_g2_ok")
        return I("v_cmp_u_f32 vcc, v%d, v%d\ns_cbranch_vccnz L_g2_nan\nL_g2_ok:" % (ACC[1] + 16, ACC[1] + 16))
    def red_write(rt):
        A = ACC[rt]
        return [DS("ds_write_b128 v2, %s offset:%d" % (v(A + 16 * t + 4 * q, 4), 128 * t + 32 * q), "rw%d" % rt)
                for t in range(2) for q in range(4)]
    def red_final(rt):
        b = ACC[rt]
        g = []
        for w in range(4):
            for q in range(2):
                ad, off = (5, w * REDW) if rt == 0 else ((5, 22)[w // 2], (w % 2) * RING)
                g.append(DS("ds_read_b128 %s, v%d offset:%d" % (v(b + 8 * w + 4 * q, 4), ad, off + 16 * q), "rd%d_%d" % (rt, w)))
        for w in range(1, 4):
            for i in range(4):
                g.append((WDS("rd%d_%d" % (rt, w)) if i == 0 else []) + I("v_pk_add_f32 %s, %s, %s" % (v(b + 2 * i, 2), v(b + 2 * i, 2), v(b + 8 * w + 2 * i, 2))))
        u = ACC[0] + 8
        if rt == 0:
            for i in range(4):
                g.append((WVM("x2") if i == 0 else []) + G.unpack(u + 2 * i, 12 + i))
                g.append(G.unpack(u + 8 + 2 * i, 24 + i))
        for i in range(4):
            g.append(I("v_pk_fma_f32 %s, %s, %s, %s" % (v(b + 2 * i, 2), v(b + 2 * i, 2), v(u + 2 * i, 2), v(u + 8 + 2 * i, 2))))
        for i in range(4):
            g.append(I("v_cvt_pk_bf16_f32 v%d, v%d, v%d" % (b + 24 + i, b + 2 * i, b + 2 * i + 1)))
        g.append(VM("buffer_store_dwordx4 %s, v4, %s, s48 offen" % (v(b + 24, 4), SO), "out"))
        if rt == 0:
            g.append(I("s_add_u32 s48, s48, %d" % (2 * TILE)))
            g.append(I("s_mul_i32 s58, s3, %d\ns_add_u32 s58, s58, %d\nv_add_u32 v2, s58, v2" % (RING - REDW, HALF + 4096)))
            g.append(I("v_add_u32 v5, %d, v5\nv_add_u32 v22, %d, v5" % (HALF + 4096, 2 * RING)))
            for i in range(4): g.append(G.unpack(u + 8 + 2 * i, 28 + i))
        return g
    S += g2m(0) + g2m(1)
    ack, fl, use_e = C["ack"], C["flat"], C["use_e"]
    flagck = ["v_cmp_ne_u64 vcc, s[50:51], v[20:21]"]
    ldF = "buffer_load_dwordx2 v[20:21], v9, %s, 0 offen sc1" % WS
    addrC = I("""
    s_lshl_b32 s45, s46, 2
    s_add_u32 s45, s45, s3
    s_lshl_b32 s45, s45, 7
    s_add_u32 s45, s45, %d
    v_and_b32 v9, 3, v1
    v_lshl_add_u32 v9, v9, 5, s45
    v_bfe_u32 v22, v1, 2, 1
    v_lshl_add_u32 v9, v22, 10, v9
    """ % FLAGC)
    addrD = I("""
    s_lshr_b32 s45, s46, 2
    s_lshl_b32 s45, s45, 6
    s_mul_i32 s47, s3, 14
    s_add_u32 s45, s45, s47
    s_lshl_b32 s45, s45, 5
    s_add_u32 s45, s45, %d
    v_min_u32 v9, 13, v1
    v_lshl_add_u32 v9, v9, 5, s45
    v_lshrrev_b32 v16, 3, v1
    v_and_b32 v17, 7, v1
    v_mul_u32_u24 v18, 896, v16
    v_lshl_add_u32 v18, v17, 4, v18
    v_lshlrev_b32 v22, 4, v17
    s_lshl_b32 s49, s55, 7
    s_add_u32 s49, s49, %d
    s_add_u32 s45, s48, %d
    s_add_u32 s47, s45, %d
    """ % (FLAGD, MODB + 5 * 896, X2, 2 * TILE))
    addrR = I("""
    v_mul_u32_u24 v2, %d, v4
    v_lshl_add_u32 v2, v5, 4, v2
    s_mul_i32 s62, s3, %d
    v_add_u32 v2, s62, v2
    v_mul_u32_u24 v5, %d, v16
    v_lshl_add_u32 v5, v17, 5, v5
    s_mul_i32 s62, s3, %d
    v_add_u32 v5, s62, v5
    v_mov_b32 v4, v18
    """ % (REDP, REDW, REDP, 8 * REDP))
    qst, qh2, qwd, qhh, qfl = [], [], [], [], []
    for t in range(4):
        e = epi1(t)
        b0 = 56 * (t + 1)
        lo, hi = b0 + e0, b0 + (e1 if t < 3 else 12)
        half = (lo + hi) // 2
        S = weave(S, e[:12], lo, half)
        S = weave(S, e[13:25], half, hi)
        qst += [(half - 1, 0, e[12]), (hi - 1, 0, e[25])]
    for t in range(3):
        qh2 += [(56 * t, 56 * t + 1, g) for g in h2dma(t + 1, True)]
    qmisc = [(0, 14, g) for g in G.x2st] + [(30, 60, g) for g in hh_clears()]
    for ks in range(n1, 28):
        for g in wd_dma(ks): qwd.append((0 if ks < 13 else 24 + 5 * (ks - 13), 40 + 4 * ks, g))
    fC = 56 + 30
    qfl.append((fC, 0, WVM("x2_st") + G.flag_store(8, 6, "flagC_st")))
    qfl.append((112 + 12, 0, VM(ldF, "flagC_ld")))
    fD = 112 + e1 + ack
    qfl.append((fD, 0, I("v_mov_b32 v8, s56") + WVM("hh_st1") + G.flag_store(8, 6, "flagD_st")))
    qfl.append((fD + fl, 0, VM(ldF, "flagD_ld")))
    ckD = fD + 2 * fl
    qx = [(168, 170, VM("buffer_load_dwordx4 v[24:27], v18, %s, s45 offen sc1" % WS, "x2")),
          (168, 170, VM("buffer_load_dwordx4 v[28:31], v18, %s, s47 offen sc1" % WS, "x2")),
          (224, 300, VM("buffer_load_dwordx4 v[12:15], v22, %s, s49 offen sc1" % WS, "x2"))]
    r1 = 224 + C["rt1_start"]
    if use_e:
        fE = 168 + e1 + ack
        qfl.append((fE, 0, WVM("hh_st2") + I("s_mov_b64 exec, 1") + VM("buffer_store_dwordx2 v[6:7], v8, %s, 0 offen offset:8 sc1" % WS, "flagE_st") + I("s_mov_b64 exec, -1")))
        qfl.append((fE + fl, 0, I("v_add_u32 v9, 8, v9") + VM(ldF, "flagE_ld")))
        assert fE + fl > ckD and fE + fl + 4 < r1
    for ks in range(28): qhh.append((max(ckD + 1, 168 + ks + 3), 200 + 2 * ks, hhload(0, ks)))
    for ks in range(28): qhh.append((r1, 256 + 2 * ks, (WVM("hh_st3") if ks == 0 else []) + hhload(1, ks)))
    S = weave(S, singles(addrC), 100, 112)
    S[112 + 12 + fl + 2] += WVM("flagC_ld") + G.spin("fc", [ldF], flagck)
    assert 112 + 12 + fl + 3 < 150 and 166 < fD + fl + 14
    S = weave(S, singles(addrD), 112 + 12 + fl + 3, min(fD + fl, 166))
    S[ckD] += WVM("flagD_ld") + G.spin("fd", [ldF], flagck)
    if use_e: S[r1 - 1] += WVM("flagE_ld") + G.spin("fe", [ldF], flagck)
    S = weave(S, singles(addrR), 190, 210)
    wh = slots(S, [qst, qfl, qh2, qmisc, qx, qwd, qhh], lambda i: C["gap1"] if i < ckD else C["gap2"])
    assert wh["x2_st"] < 20 and wh["clr5"] < 112 + 12 + fl + 3 and wh["flagC_ld"] < 112 + 12 + fl + 2 and wh["flagD_ld"] < ckD
    assert wh["flagC_st"] < 112 and wh["hh_st1"] < wh["flagD_st"] and wh["hh_st3"] < wh["hh1_0"]
    if use_e: assert wh["hh_st2"] < wh["flagE_st"] and wh["flagE_ld"] < r1 - 1
    for t in range(3):
        lo = min(56 * t + 40, max(56 * t + 30, wh["h2_%d" % (t + 1)] + C["h2_lat"]))
        assert wh["h2_%d" % (t + 1)] < lo
        S = weave(S, verify_items(t + 1), lo, 56 * t + 50)
    at = 20
    for ks in range(22):
        at = max(at, wh.get("wd%d" % ks, -100) + C["wd_lat"])
        S = weave(S, wd_tr(ks), at, at + 4)
        at += 4
        assert at < 224 + 2 * ks
    fs = flat(S)
    for ks in range(13, 28):
        first = [i for i, x in enumerate(fs) if x[0] == "vm" and x[2] == "wd%d" % ks][0]
        last = [i for i, x in enumerate(fs) if x[0] == "ds" and x[2] == "wt%d" % (ks - 13)][-1]
        assert last < first, "ring slot of k-step %d reused too early" % ks
    for i, g in enumerate(S):
        for k, x in enumerate(g):
            if x[0] == "vm" and x[2] and x[2].startswith("wd") and int(x[2][2:]) >= 13:
                S[i] = g[:k - 2] + WDS("wt%d" % (int(x[2][2:]) - 13)) + g[k - 2:]
                break
    for ks in range(28): assert wh["hh0_%d" % ks] < 224 + 2 * ks
    for gq in range(7):
        assert wh["hh1_%d" % (4 * gq + 3)] < 280 + 8 * gq - 5
        S = weave(S, hhcheck(gq), 280 + 8 * gq - 5, 280 + 8 * gq)
    S[268] += I("s_barrier")
    S = weave(S, red_write(0), 284, 294)
    S[297] += WDS("rw0") + I("s_barrier")
    assert wh["x2"] < 298
    S = weave(S, red_final(0), 298, 322)
    for t, nm in enumerate(("g1_0", "_g1_1", "_g1_2", "g1_3", "g2_0")): S[56 * t + 55] += G.stamp(nm)
    if "-w" in sys.argv: print(sorted(wh.items(), key=lambda x: x[1]))
    p.add(flat(S))
    p.add(nan_net())
    p.add(G.stamp("g2_1"))
    p.add(flat(red_write(1)))
    p("s_waitcnt lgkmcnt(0)\ns_barrier")
    p.add(flat(red_final(1)))
```

```python
import hz

class Prog:
    def __init__(self):
        self.items = []
        self.tail = []
        self.nstamp = 0
        self.stamp_names = []
    def __call__(self, s):
        for l in s.split("\n"):
            l = l.strip()
            if l:
                self.items.append(("i", l, None))
    def vm(self, s, tag=None): self.items.append(("vm", s, tag))
    def ds(self, s, tag=None): self.items.append(("ds", s, tag))
    def wvm(self, tag): self.items.append(("wvm", None, tag))
    def wds(self, tag): self.items.append(("wds", None, tag))
    def add(self, items): self.items.extend(items)
    def out(self, s):
        for l in s.split("\n"):
            l = l.strip()
            if l:
                self.tail.append(l)
    def resolve(self):
        lines = []
        seq = {"vm": [], "ds": []}
        done = {"vm": 0, "ds": 0}
        import re
        drop = getattr(self, "drop", None)
        for kind, text, tag in self.items:
            if drop and tag and re.fullmatch(drop, tag):
                continue
            if kind in ("vm", "ds"):
                seq[kind].append(tag); lines.append(text)
            elif kind in ("wvm", "wds"):
                k = kind[1:]
                idx = max(i for i, t in enumerate(seq[k]) if t == tag)
                if idx < done[k]:
                    continue
                n = len(seq[k]) - 1 - idx
                lim = 63 if k == "vm" else 15
                n = min(n, lim)
                done[k] = len(seq[k]) - n
                lines.append("s_waitcnt %s(%d)" % ("vmcnt" if k == "vm" else "lgkmcnt", n))
            else:
                lines.append(text)
                if text.startswith("s_waitcnt") and "; cond" not in text:
                    if "vmcnt(0)" in text: done["vm"] = len(seq["vm"])
                    if "lgkmcnt(0)" in text: done["ds"] = len(seq["ds"])
        return lines

def fmt(lines):
    return [l if (l.endswith(":") or l.startswith(".")) else "    " + l for l in lines]

def weave(main, fill, start=0, end=None):
    end = len(main) if end is None else end
    n = end - start
    out, k = [], 0
    for i, m in enumerate(main):
        out.append(list(m))
        if start <= i < end:
            upto = (len(fill) * (i - start + 1) + n - 1) // n if i < end - 1 else len(fill)
            while k < upto:
                out[-1].extend(fill[k]); k += 1
    return out

def flat(groups):
    return [x for g in groups for x in g]
def I(s): return [("i", l.strip(), None) for l in s.split("\n") if l.strip()]
def VM(s, tag=None): return [("vm", s, tag)]
def DS(s, tag=None): return [("ds", s, tag)]
def WVM(tag): return [("wvm", None, tag)]
def WDS(tag): return [("wds", None, tag)]

def singles(items):
    out, glue = [], False
    for x in items:
        if glue: out[-1].append(x)
        else: out.append([x])
        glue = x[0] == "i" and x[1].startswith("s_cmp")
    return out

def slots(S, queues, gap, start=0):
    heads = [0] * len(queues)
    pos, where = float(start), {}
    while any(h < len(q) for h, q in zip(heads, queues)):
        i = int(pos)
        assert i < len(S), "requests left over"
        ready = [k for k, q in enumerate(queues) if heads[k] < len(q) and q[heads[k]][0] <= i]
        if not ready:
            pos = i + 1.0
            continue
        k = min(ready, key=lambda k: queues[k][heads[k]][1])
        e, d, g = queues[k][heads[k]]
        S[i] = S[i] + g
        for x in g:
            if x[0] == "vm": where[x[2]] = i
        heads[k] += 1
        pos += gap(i) if callable(gap) else gap
    return where
```

```python
import sys
import hz
from prog import *
from asmlib import NAME, HEAD, entry, kd

EPOCH, FLAGA, FLAGB, MOD, MODB, FLAGC, FLAGD = 0, 0x1000, 0x8000, 0xC000, 0x10000, 0x18000, 0x20000
KVT, YY, H2, X2, HH, WS_SIZE = 0x200000, 0x200000, 0x600000, 0x800000, 0xA00000, 0x1200000
STAMP_OFF = 32 << 20
KVR = 4608
STG, HALF, R0, RING = 0, 57344, 114688, 26624
KL, KP = R0, 4224
KVL, KVP = R0 + 16896, 1056
U0, UCH = R0 + 28672, 12288
EX = R0
def exoff(T): return 4096 * T if T < 7 else 36864
MODL, BS, BSP = 163840 - 9216, 28672, 928
TILE = 28672
RED, REDW, REDP = 0, 8704, 272
LDS_BYTES = 163840
OOB = 0x80000000
SPIN = 1 << 16
WS, SK, SV, SSH, SSK, SQ, SG, SU, SD, SO, SC = ("s[%d:%d]" % (b, b + 3) for b in (4, 8, 12, 16, 20, 24, 28, 32, 36, 40, 44))
ACC = (48, 80)
HF = 32

def v(b, n=1): return "v%d" % b if n == 1 else "v[%d:%d]" % (b, b + n - 1)
def ar(b, n=1): return "a%d" % b if n == 1 else "a[%d:%d]" % (b, b + n - 1)
def txt(items): return "\n".join(x[1] for x in items)
def wd_reg(ks, t):
    if ks < 4: return "a", 224 + 8 * ks + 4 * t
    return "v", 112 + 8 * (ks - 4) + 4 * t
def rr(kind, b, n): return (v if kind == "v" else ar)(b, n)

CFG = dict(sl=0, sl_fb=16, sl_yy=4, clr_first=0, fa_at=20, q_w1=4, q_w2=10, q_w3=10, bw=22, bx=50, by=84, q3_conv=14, cgap=4.0, fb_at=120,
           hpf=0, hdelay=1, wd_w5=5, wd_pre=4, wd_post=3, gap1=2.4, gap2=2.0, wd_lat=40, h2_lat=26,
           epi=(3, 16), ack=24, flat=16, rt1_start=26, use_e=0)

class Gen:
    def __init__(self, stamps=False, probe=None):
        self.p = Prog()
        self.probe, self.stamps = probe, stamps
        self.cfg = dict(CFG)
        self.names = []

    def stamp(self, name):
        if self.probe:
            if name == "start": return I("s_memrealtime s[100:101]")
            return I("s_memrealtime s[98:99]") if name == self.probe else []
        if not self.stamps: return []
        sel = self.cfg.get("st")
        if sel and name != "start" and name not in sel: return []
        if not sel and name.startswith("_"): return []
        if name not in self.names: self.names.append(name)
        i = self.names.index(name)
        b = 100 if i == 0 else 68 + 2 * (i - 1)
        assert i == 0 or b < 100
        return I("s_memrealtime s[%d:%d]" % (b, b + 1))

    def unpack(self, dst, src):
        return I("v_lshlrev_b32 %s, 16, %s\nv_and_b32 %s, 0xffff0000, %s" % (v(dst), v(src), v(dst + 1), v(src)))

    def smax(self, dst, regs):
        regs = list(regs)
        out = ["v_max3_u32 %s, %s, %s, %s" % (v(dst), v(regs[0]), v(regs[1]), v(regs[2]))]
        regs = regs[3:]
        while len(regs) >= 2:
            out.append("v_max3_u32 %s, %s, %s, %s" % (v(dst), v(dst), v(regs[0]), v(regs[1]))); regs = regs[2:]
        if regs: out.append("v_max_u32 %s, %s, %s" % (v(dst), v(dst), v(regs[0])))
        return out + ["v_cmp_eq_u32 vcc, -1, %s" % v(dst)]

    def phase(self, dst, regs, want):
        r = list(regs)
        op3 = "v_bitop3_b32 %s, %s, %s, %s bitop3:0x80" if want else "v_or3_b32 %s, %s, %s, %s"
        out = [op3 % (v(dst), v(r[0]), v(r[1]), v(r[2])), op3 % (v(dst), v(dst), v(r[3]), v(r[4])), op3 % (v(dst), v(dst), v(r[5]), v(r[6]))]
        if want: return out + [op3 % (v(dst), v(dst), v(r[7]), "1"), "v_cmp_eq_u32 vcc, 0, %s" % v(dst)]
        return out + ["v_bitop3_b32 %s, %s, %s, 1 bitop3:0xa8" % (v(dst), v(dst), v(r[7])), "v_cmp_ne_u32 vcc, 0, %s" % v(dst)]

    def spin(self, name, reload_lines, check_lines, inline=None):
        o = self.p.out
        o("L_%s_retry:\ns_mov_b32 s67, 0\nL_%s_loop:" % (name, name))
        sl = self.cfg.get("sl_" + name, self.cfg["sl"])
        if sl: o("s_sleep %d" % sl)
        o("\n".join(reload_lines))
        o("s_waitcnt vmcnt(0) lgkmcnt(0)")
        o("\n".join(check_lines))
        o("s_cbranch_vccz L_%s_ok\ns_add_u32 s67, s67, 1\ns_cmp_lt_u32 s67, %d\ns_cbranch_scc1 L_%s_loop\ns_branch L_%s_ok" % (name, SPIN, name, name))
        return I("\n".join(check_lines if inline is None else inline) + "\ns_cbranch_vccnz L_%s_retry\nL_%s_ok:" % (name, name))

    def flag_store(self, addr, data, tag):
        return I("s_mov_b64 exec, 1") + VM("buffer_store_dwordx2 %s, v%d, %s, 0 offen sc1" % (v(data, 2), addr, WS), tag) + I("s_mov_b64 exec, -1")

    def srd(self, b, size): return "s_mov_b32 s%d, %d\ns_mov_b32 s%d, 0x20000" % (b + 2, size, b + 3)

    def prologue(self):
        p = self.p
        p.add(self.stamp("start"))
        p("""
        s_cmp_ge_u32 s2, 256
        s_cbranch_scc1 L_end
        s_load_dwordx16 s[56:71], s[0:1], 0
        s_load_dwordx2 s[4:5], s[0:1], 112
        s_load_dwordx8 s[72:79], s[0:1], 64
        s_load_dwordx2 s[40:41], s[0:1], 96
        s_getpc_b64 s[44:45]
        s_and_b32 s44, s44, 0xffffff00
        s_mov_b32 s46, L_code_end-%s_kernel
        s_mov_b32 s47, 0x20000
        v_lshlrev_b32 v2, 7, v0
        """ % NAME)
        p.vm("buffer_load_dword v3, v2, %s, 0 offen" % SC, "code")
        p("""
        v_and_b32 v1, 63, v0
        v_lshrrev_b32 v2, 6, v0
        s_and_b32 s52, s2, 7
        s_lshr_b32 s53, s2, 3
        v_readfirstlane_b32 s3, v2
        s_mul_i32 s54, s53, 37
        s_lshr_b32 s54, s54, 8
        s_mul_i32 s55, s54, 7
        s_sub_u32 s55, s53, s55
        v_lshlrev_b32 v11, 4, v1
        s_cmp_ge_u32 s53, 28
        s_cbranch_scc1 L_helper
        """)

    def common_setup(self):
        s = "s_load_dwordx2 s[50:51], s[4:5], %d\n" % EPOCH
        s += "s_mov_b64 s[24:25], s[56:57]\ns_mov_b64 s[28:29], s[70:71]\ns_mov_b64 s[32:33], s[72:73]\ns_mov_b64 s[36:37], s[74:75]\n"
        for b, sz in ((24, 1835008), (28, 1605632), (32, 1605632), (36, 1605632), (40, 1835008)):
            s += self.srd(b, sz) + "\n"
        s += """
        s_and_b32 s57, s53, 7
        s_lshl_b32 s57, s57, 5
        s_and_b32 s58, s53, 24
        s_add_u32 s57, s57, s58
        s_lshl_b32 s58, s52, 8
        s_add_u32 s57, s57, s58
        s_lshr_b32 s58, s3, 1
        s_add_u32 s57, s57, s58
        s_and_b32 s58, s3, 1
        s_lshl_b32 s58, s58, 2
        s_add_u32 s57, s57, s58
        v_lshrrev_b32 v2, 5, v1
        v_lshl_add_u32 v2, v2, 1, s57
        v_and_b32 v24, 31, v1
        v_bfe_u32 v25, v2, 1, 3
        v_mul_u32_u24 v2, 896, v2
        v_xor_b32 v25, v25, v24
        v_lshl_add_u32 v26, v24, 4, v2
        v_lshl_add_u32 v28, v25, 4, v2
        v_cmp_gt_u32 vcc, 24, v24
        v_mov_b32 v25, 0x%x
        v_add_u32 v27, 512, v26
        v_add_u32 v29, 512, v28
        v_cndmask_b32 v27, v25, v27, vcc
        v_cndmask_b32 v29, v25, v29, vcc
        """ % OOB
        return s

    def x_loads(self):
        return [VM("buffer_load_dwordx4 v[112:115], v26, %s, 0 offen" % SQ, "x"),
                VM("buffer_load_dwordx4 v[116:119], v27, %s, 0 offen" % SQ, "x")]

    def h2_clears(self, tag):
        return [I("s_mov_b32 s66, %d" % H2) + VM("buffer_store_dwordx4 v[120:123], v28, %s, s66 offen sc1" % WS, tag),
                VM("buffer_store_dwordx4 v[120:123], v29, %s, s66 offen sc1" % WS, tag)]

    def wgu_dma(self, q):
        g = []
        for ks in range(7):
            g.append(I("s_add_u32 m0, s60, %d\ns_mov_b32 s59, %d" % ((q & 1) * HALF + ks * 8192, (7 * q + ks) * 57344))
                     + VM("buffer_load_dwordx4 v20, %s, s59 offen lds" % SG, "wq%d" % q))
            g.append(VM("buffer_load_dwordx4 v20, %s, s59 offen offset:1024 lds" % SU, "wq%d" % q))
        return g

    def wgu_tr(self, q):
        g = []
        for ks in range(7):
            for X in range(2):
                for i in range(2):
                    g.append(DS("ds_read_b64_tr_b16 %s, %s offset:%d" % (
                        ar(8 * (7 * q + ks) + 4 * X + 2 * i, 2), v(21 + (q & 1)), ks * 8192 + i * 2048 + X * 1024), "wtr%d" % q))
        return g

    def wd_addr(self):
        return I("""
        v_lshrrev_b32 v10, 5, v1
        v_bfe_u32 v9, v1, 2, 3
        v_mul_u32_u24 v3, 896, v9
        v_lshl_add_u32 v3, v10, 6, v3
        v_and_b32 v9, 3, v1
        v_lshl_add_u32 v3, v9, 4, v3
        s_mul_i32 s58, s3, %d
        s_lshl_b32 s59, s55, 7
        s_add_u32 s58, s58, s59
        s_cmp_ge_u32 s53, 28
        s_cselect_b32 s58, 0x%x, s58
        v_add_u32 v3, s58, v3
        s_mul_i32 s64, s3, %d
        s_add_u32 s64, s64, %d
        """ % (448 * 896, OOB, RING, HALF))

    def wd_dma(self, ks):
        return [I("s_add_u32 m0, s64, %d\ns_mov_b32 s58, %d" % ((ks % 13) * 2048 + 1024 * i, ks * 16 * 896 + 8 * 896 * i))
                + VM("buffer_load_dwordx4 v3, %s, s58 offen lds" % SD, "wd%d" % ks) for i in range(2)]

    def ln_stats(self, x, S, Q):
        g = I("v_pk_add_f32 %s, %s, %s" % (v(S, 2), v(x, 2), v(x + 2, 2)))
        g += I("v_pk_mul_f32 %s, %s, %s" % (v(Q, 2), v(x, 2), v(x, 2)))
        g += I("v_pk_fma_f32 %s, %s, %s, %s" % (v(Q, 2), v(x + 2, 2), v(x + 2, 2), v(Q, 2)))
        for i in range(2, 8):
            g += I("v_pk_add_f32 %s, %s, %s" % (v(S, 2), v(S, 2), v(x + 2 * i, 2)))
            g += I("v_pk_fma_f32 %s, %s, %s, %s" % (v(Q, 2), v(x + 2 * i, 2), v(x + 2 * i, 2), v(Q, 2)))
        g += I("""
        v_add_f32 {S}, {S}, {S1}
        v_add_f32 {Q}, {Q}, {Q1}
        v_permlane16_swap_b32 {S}, {Q}
        v_add_f32 {S}, {S}, {Q}
        v_add_f32_dpp {S}, {S}, {S} quad_perm:[1,0,3,2]{d}
        v_add_f32_dpp {S}, {S}, {S} quad_perm:[2,3,0,1]{d}
        v_add_f32_dpp {S}, {S}, {S} row_half_mirror{d}
        v_add_f32_dpp {S}, {S}, {S} row_mirror{d}
        v_mul_f32 {S1}, 0x3b124925, {S}
        v_mul_f32 {Q}, 0x3b124925, {S}
        v_permlane16_swap_b32 {S1}, {Q}
        v_fma_f32 {Q}, -{S1}, {S1}, {Q}
        v_max_f32 {Q}, 0, {Q}
        v_add_f32 {Q}, 0x3727c5ac, {Q}
        v_rsq_f32 {S}, {Q}
        v_mul_f32_e64 {S1}, -{S1}, {S}
        """.format(S=v(S), S1=v(S + 1), Q=v(Q), Q1=v(Q + 1), d=" row_mask:0xf bank_mask:0xf"))
        return g

    def ln1(self):
        g = []
        for i in range(8): g += self.unpack(64 + 2 * i, 112 + i)
        return g + self.ln_stats(64, 6, 8)

    def p1(self):
        p, C = self.p, self.cfg
        p("""
        s_lshl_b32 s48, s52, 2
        s_add_u32 s48, s48, s54
        v_lshrrev_b32 v4, 3, v1
        v_and_b32 v5, 7, v1
        v_mul_u32_u24 v6, 896, v4
        v_lshl_add_u32 v6, v5, 4, v6
        s_mul_i32 s49, s48, %d
        s_lshl_b32 s46, s55, 7
        s_add_u32 s49, s49, s46
        v_add_u32 v6, s49, v6
        v_subrev_u32 v7, %d, v6
        v_cmp_gt_i32 vcc, 0, v7
        v_mov_b32 v8, 0x%x
        s_mul_i32 s49, s3, %d
        v_add_u32 v6, s49, v6
        v_cndmask_b32 v7, v7, v8, vcc
        s_lshl_b32 s49, s3, 3
        v_add_u32 v5, s49, v5
        v_mul_u32_u24 v9, 9216, v5
        v_lshl_add_u32 v9, v4, 4, v9
        s_mul_i32 s49, s55, 294912
        s_lshl_b32 s46, s48, 7
        s_add_u32 s49, s49, s46
        s_add_u32 s49, s49, %d
        v_add_u32 v9, s49, v9
        v_add_u32 v10, 4608, v9
        v_mov_b32 v120, -1
        v_mov_b32 v121, -1
        v_mov_b32 v122, -1
        v_mov_b32 v123, -1
        s_mul_i32 s46, s3, %d
        s_mov_b32 m0, %d
        s_movk_i32 s45, 7168
        %s
        %s
        %s
        s_waitcnt lgkmcnt(0)
        """ % (64 * 896, 8 * 896, OOB, 16 * 896, KVT, 2 * KVP, KVL, self.srd(4, WS_SIZE), self.srd(8, 1835008), self.srd(12, 1835008)))
        clr1 = VM("buffer_store_dwordx4 v[120:123], v9, %s, 0 offen sc1" % WS, "clr1") + \
               VM("buffer_store_dwordx4 v[120:123], v10, %s, 0 offen sc1" % WS, "clr1")
        p("""
        s_mov_b64 s[8:9], s[58:59]
        s_mov_b64 s[12:13], s[60:61]
        s_cmp_lg_u32 s3, 0
        s_cbranch_scc1 L_nohalo
        buffer_load_dwordx4 v7, %s, 0 offen lds
        L_nohalo:
        """ % SK)
        if C["clr_first"]: p.add(clr1)
        p("s_add_u32 m0, s46, %d\ns_lshl_b32 s49, s55, 9" % (KVL + KVP))
        p.vm("buffer_load_dwordx4 v6, %s, 0 offen lds" % SK, "kv")
        p("s_add_u32 m0, m0, %d\nv_lshlrev_b32 v8, 4, v5" % KVP)
        p.vm("buffer_load_dwordx4 v6, %s, s45 offen lds" % SK, "kv")
        p("s_add_u32 m0, m0, %d\ns_mov_b64 s[16:17], s[62:63]" % (7 * KVP))
        p.vm("buffer_load_dwordx4 v6, %s, 0 offen lds" % SV, "kv")
        p("s_add_u32 m0, m0, %d\n%s" % (KVP, self.srd(16, 3584)))
        p.vm("buffer_load_dwordx4 v6, %s, s45 offen lds" % SV, "kv")
        p.vm("buffer_load_dwordx4 v[52:55], v8, %s, s49 offen" % SSH, "kv")
        if not C["clr_first"]: p.add(clr1)
        p(self.common_setup())
        p.add(self.stamp("_kvreq"))
        p("""
        s_mov_b64 s[20:21], s[64:65]
        %s
        s_mul_i32 s56, s52, 28
        s_add_u32 s56, s56, s53
        s_lshl_b32 s57, s56, 2
        s_load_dword s49, s[66:67], s57
        s_sub_u32 s32, s32, 1024
        s_subb_u32 s33, s33, 0
        s_mov_b32 s34, %d
        s_lshr_b32 s64, s3, 1
        s_and_b32 s65, s3, 1
        s_lshl_b32 s57, s56, 1
        s_add_u32 s57, s57, s64
        s_lshl_b32 s57, s57, 12
        s_mul_i32 s58, s3, %d
        s_lshl_b32 s59, s65, 2
        s_add_u32 s59, s59, s58
        s_add_u32 m0, s59, %d
        s_add_u32 s58, s58, %d
        """ % (self.srd(20, 1835008), 1605632 + 1024, KP, KL + 64, KL))
        for i in range(4):
            p.vm("buffer_load_dwordx4 v11, %s, s57 offen offset:%d lds" % (SSK, 1024 * i), "K")
        p.add(self.stamp("issued"))
        p("""
        s_mul_i32 s57, s56, 9216
        s_lshl_b32 s59, s3, 10
        s_add_u32 s57, s57, s59
        s_add_u32 s57, s57, %d
        v_add_u32 v12, s57, v11
        v_add_u32 v13, 4608, v12
        """ % YY)
        p("""
        s_add_u32 s59, s65, 15
        v_min_u32 v14, s59, v1
        v_lshl_add_u32 v14, v14, 2, s58
        v_mov_b32 v104, 0
        """)
        p.ds("ds_write_b32 v14, v104")
        p("""
        v_mul_u32_u24 v16, %d, v4
        v_lshl_add_u32 v16, v5, 2, v16
        v_add_u32 v16, %d, v16
        v_add_u32 v17, %d, v16
        v_add_u32 v18, %d, v16
        s_and_b32 s57, s52, 1
        s_mul_i32 s57, s57, 7
        s_add_u32 s57, s57, s55
        s_lshl_b32 s61, s57, 13
        s_lshl_b32 s57, s57, 8
        s_mul_i32 s58, s3, %d
        s_add_u32 s57, s57, s58
        v_bfe_u32 v14, v1, 2, 2
        v_mul_u32_u24 v20, 3584, v14
        v_lshrrev_b32 v15, 4, v1
        v_lshl_add_u32 v20, v15, 6, v20
        v_and_b32 v15, 3, v1
        v_lshl_add_u32 v20, v15, 4, v20
        v_add_u32 v20, s57, v20
        v_lshlrev_b32 v21, 6, v14
        v_lshl_add_u32 v21, v15, 3, v21
        v_bfe_u32 v15, v1, 4, 1
        v_lshl_add_u32 v21, v15, 5, v21
        v_mov_b32 v23, v21
        v_lshrrev_b32 v15, 5, v1
        v_lshl_add_u32 v21, v15, 12, v21
        v_lshl_add_u32 v23, v15, 8, v23
        s_lshl_b32 s57, s3, 8
        v_add_u32 v21, s57, v21
        v_add_u32 v22, %d, v21
        s_mul_i32 s57, s3, %d
        s_add_u32 s57, s57, %d
        v_add_u32 v23, s57, v23
        s_lshl_b32 s60, s3, 11
        s_add_u32 s61, s61, s60
        s_lshr_b32 s57, s52, 1
        s_lshl_b32 s57, s57, 2
        s_add_u32 s57, s57, s54
        s_mul_i32 s57, s57, %d
        s_add_u32 s61, s61, s57
        s_add_u32 s61, s61, %d
        s_lshl_b32 s57, s55, 2
        s_add_u32 s57, s57, s3
        s_lshl_b32 s57, s57, 5
        s_add_u32 s57, s57, s48
        s_lshl_b32 s57, s57, 5
        s_add_u32 s57, s57, %d
        v_mov_b32 v14, s57
        """ % (KVP, KVL, KVP, 9 * KVP, 4 * 3584, HALF, RING, HALF, 4 * 112 * 1024, HH, FLAGA))
        self.Q = self.wgu_dma(0) + self.wgu_dma(1)
        p.add(flat(self.Q[:C["q_w1"]]))
        p("s_waitcnt lgkmcnt(0)\ns_add_u32 s50, s50, 1\ns_addc_u32 s51, s51, 0\nv_mov_b32 v124, s50\nv_mov_b32 v125, s51")
        p.add(self.stamp("_epoch"))
        if C["clr_first"]:
            p.wvm("clr1")
            p.add(self.flag_store(14, 124, "flagA_st"))
        p.wvm("kv")
        p.add(self.stamp("_kvland"))
        p("s_barrier")
        p.add(self.stamp("k_in"))
        p.ds("ds_read2_b32 v[32:33], v16 offset0:160 offset1:192", "k0")
        p.ds("ds_read_b32 v34, v16 offset:896", "k0")
        for r in range(4):
            p.ds("ds_read2_b32 %s, v17 offset0:%d offset1:%d" % (v(36 + 2 * r, 2), 64 * r, 64 * r + 32), "k%d" % (r + 1))
        for r in range(4):
            p.ds("ds_read2_b32 %s, v18 offset0:%d offset1:%d" % (v(44 + 2 * r, 2), 64 * r, 64 * r + 32), "v")
        if not C["clr_first"]:
            p.wvm("clr1")
            p.add(self.flag_store(14, 124, "flagA_st"))
        for jj in range(4):
            lo, hi = 52 + jj // 2, 54 + jj // 2
            if jj % 2 == 0:
                p("v_lshlrev_b32 v%d, 16, v%d\nv_lshlrev_b32 v%d, 16, v%d" % (56 + 2 * jj, lo, 57 + 2 * jj, hi))
            else:
                p("v_and_b32 v%d, 0xffff0000, v%d\nv_and_b32 v%d, 0xffff0000, v%d" % (56 + 2 * jj, lo, 57 + 2 * jj, hi))
        for r in range(11):
            p.wds("k0" if r < 3 else "k%d" % ((r - 3) // 2 + 1))
            p.add(self.unpack(64 + 2 * r, 32 + r if r < 3 else 33 + r))
        for jj in range(4):
            for r in range(8):
                kk = v(64 + 2 * (r + 3 - jj), 2); acc = v(86 + 2 * r, 2); w = v(56 + 2 * jj, 2)
                p("v_pk_mul_f32 %s, %s, %s" % (acc, kk, w) if jj == 0 else "v_pk_fma_f32 %s, %s, %s, %s" % (acc, kk, w, acc))
        p.wds("v")
        for r in range(8):
            p.add(self.unpack(64 + 2 * r, 44 + r))
        for r in range(8):
            p("v_pk_mul_f32 %s, %s, %s" % (v(86 + 2 * r, 2), v(86 + 2 * r, 2), v(64 + 2 * r, 2)))
        for e in range(2):
            for m in range(4):
                p("v_cvt_pk_bf16_f32 v%d, v%d, v%d" % (104 + 4 * e + m, 86 + 2 * (7 - 2 * m) + e, 86 + 2 * (6 - 2 * m) + e))
            for m in range(4):
                p("v_and_b32 v%d, -2, v%d" % (104 + 4 * e + m, 104 + 4 * e + m))
            p.vm("buffer_store_dwordx4 %s, v%d, %s, 0 offen sc1" % (v(104 + 4 * e, 4), 9 + e, WS), "kv_st")
        p.add(self.stamp("kv_st"))

    def conv(self):
        p, C = self.p, self.cfg
        p("""
        s_lshr_b32 s57, s56, 3
        s_lshl_b32 s57, s57, 10
        s_add_u32 s57, s57, %d
        v_lshrrev_b32 v14, 3, v0
        v_lshl_add_u32 v14, v14, 5, s57
        v_and_b32 v4, 15, v1
        v_lshrrev_b32 v5, 4, v1
        v_and_b32 v2, 1, v1
        v_xor_b32 v2, 1, v2
        v_mul_u32_u24 v15, %d, v2
        v_lshl_add_u32 v15, v4, 2, v15
        v_lshl_add_u32 v15, v5, 4, v15
        s_mul_i32 s57, s64, %d
        s_lshl_b32 s58, s65, 8
        s_add_u32 s57, s57, s58
        s_add_u32 s57, s57, %d
        v_add_u32 v15, s57, v15
        v_mov_b32 v32, 0
        v_mov_b32 v33, 0
        v_mov_b32 v34, 0
        v_mov_b32 v35, 0
        s_mul_i32 s57, s65, %d
        s_add_u32 s57, s57, %d
        v_add_u32 v16, s57, v11
        v_mov_b32 v17, s57
        """ % (FLAGA, KP + 4, 2 * KP, KL + 4, UCH, U0 - 1024))
        ldA = "buffer_load_dwordx2 v[126:127], v14, %s, 0 offen sc1" % WS
        p.wvm("K")
        p("s_barrier")
        p.add(self.stamp("_Kbar"))
        kr = [DS("ds_write_b128 v16, v[32:35]"), DS("ds_write_b16 v17, v32 offset:%d" % (1024 + 142))]
        for z1 in range(8):
            for f in range(4):
                for i in range(2):
                    kr.append(DS("ds_read_b64 %s, v15 offset:%d" % (v(128 + 16 * z1 + 4 * f + 2 * i, 2), 512 * z1 + 64 * f + 8 * i), "kr"))
        a0 = I("""
        s_mul_i32 s58, s56, 9216
        s_add_u32 s62, s58, %d
        s_add_u32 s63, s62, 4608
        v_and_b32 v36, 7, v0
        v_bfe_u32 v37, v0, 3, 2
        v_lshrrev_b32 v38, 5, v0
        v_lshl_add_u32 v39, v36, 2, v37
        v_lshl_add_u32 v39, v38, 5, v39
        v_lshlrev_b32 v30, 4, v39
        """ % KVT)
        w2 = kr + singles(a0)
        w2[C["fa_at"]] = w2[C["fa_at"]] + VM(ldA, "flagA_ld") + flat(self.x_loads())
        n0 = C["q_w1"]
        n1 = n0 + C["q_w2"]
        assert n0 % 2 == 0 and n1 >= 14
        p.add(flat(weave(w2, self.Q[n0:n1], C.get("q_w2_at", 0))))
        p.add(self.stamp("_kprep1"))
        p.wvm("flagA_ld")
        p.add(self.stamp("flagA"))
        p.add(self.spin("fa", [ldA], ["v_cmp_ne_u64 vcc, s[50:51], v[126:127]"]))
        p.add(self.stamp("_faok"))
        ldU = ["buffer_load_dwordx4 v[104:107], v30, %s, s62 offen sc1" % WS,
               "buffer_load_dwordx4 v[108:111], v30, %s, s63 offen sc1" % WS]
        for l in ldU: p.vm(l, "u")
        a1 = """
        v_lshlrev_b32 v9, 4, v36
        v_lshl_add_u32 v9, v37, 8, v9
        v_lshl_add_u32 v9, v38, 10, v9
        v_add_u32 v9, %d, v9
        v_add_u32 v39, 1, v39
        v_bfe_u32 v10, v39, 2, 3
        v_lshlrev_b32 v10, 4, v10
        v_and_b32 v36, 3, v39
        v_lshl_add_u32 v10, v36, 8, v10
        v_lshrrev_b32 v36, 5, v39
        v_lshl_add_u32 v10, v36, 10, v10
        v_add_u32 v10, %d, v10
        v_cmp_eq_u32 vcc, 0xff, v0
        v_mov_b32 v36, %d
        s_mul_i32 s57, s64, %d
        v_cndmask_b32 v10, v10, v36, vcc
        s_add_u32 s57, s57, %d
        v_lshlrev_b32 v36, 7, v2
        v_lshlrev_b32 v37, 8, v5
        v_sub_u32 v38, v36, v37
        v_add_u32 v38, s57, v38
        v_lshrrev_b32 v39, 1, v4
        v_add_u32 v36, v36, v37
        v_lshl_add_u32 v25, v39, 4, v36
        s_lshl_b32 s57, s3, 10
        s_add_u32 s58, s57, %d
        v_add_u32 v25, s58, v25
        s_add_u32 s58, s57, %d
        v_add_u32 v3, s58, v11
        s_lshl_b32 s57, s3, 12
        s_add_u32 s57, s57, %d
        v_add_u32 v2, s57, v11
        s_cmp_eq_u32 s3, 3
        s_cselect_b32 s58, 0x2000, 0
        s_add_u32 s58, s58, 0x4000
        v_add_u32 v31, s58, v2
        s_lshl_b32 s57, s65, 2
        v_subrev_u32 v39, s57, v39
        """ % (U0, U0 + 142, U0 - 2048, UCH, U0 + 768, U0, EX, EX)
        for f in range(4):
            a1 += """
            v_ashrrev_i32 v36, 3, v39
            v_and_b32 v37, 7, v39
            v_lshl_add_u32 v%d, v36, 10, v38
            v_lshl_add_u32 v%d, v37, 4, v%d
            """ % (16 + f, 16 + f, 16 + f)
            if f < 3: a1 += "v_subrev_u32 v39, 1, v39\n"
        a1 += """
        s_lshl_b32 s57, s2, 5
        s_add_u32 s57, s57, %d
        s_cmp_eq_u32 s3, 0
        s_cselect_b32 s57, s57, 0x%x
        v_mov_b32 v14, s57
        """ % (FLAGB, OOB)
        n2 = n1 + C["q_w3"]
        assert n1 % 2 == 0 and n2 % 2 == 0
        p.wvm("x")
        p.add(flat(weave(singles(self.ln1() + I(a1)), self.Q[n1:n2])))
        p.add(self.stamp("_kprep2"))
        p.wvm("u")
        p.add(self.stamp("_u1"))
        p.add(self.spin("u", ldU, self.phase(36, range(104, 112), 0)))
        p.add(self.stamp("u_in"))
        for c in range(2):
            d = 104 + 4 * c
            p.ds("ds_write_b128 v9, %s offset:%d" % (v(d, 4), c * UCH))
            for m in range(3):
                p("v_alignbit_b32 v%d, v%d, v%d, 16" % (36 + 4 * c + m, d + m + 1, d + m))
            p.ds("ds_write_b16_d16_hi v9, v%d offset:%d" % (d + 3, c * UCH + 140))
            p.ds("ds_write_b16 v10, v%d offset:%d" % (d, c * UCH))
            p.ds("ds_write_b96 v9, %s offset:%d" % (v(36 + 4 * c, 3), c * UCH + 128))
        p("s_lshl_b32 s62, s49, 16\ns_and_b32 s63, s49, 0xffff0000")
        p("s_waitcnt lgkmcnt(0)\ns_barrier")
        p.add(self.stamp("_ubar"))
        def bread(f, tau): return DS("ds_read_b128 %s, v%d offset:%d" % (ar(224 + 4 * tau, 4), 16 + f, 1024 * tau), "b%d_%d" % (f, tau))
        M = []
        for f in range(4):
            for T in range(8):
                for z1 in range(T, -1, -1):
                    tau = T - z1
                    g = (WDS("b%d_%d" % (f, T)) if z1 == 0 else []) + I("v_mfma_f32_16x16x32_bf16 %s, %s, %s, %s" % (
                        v(32 + 4 * T, 4), v(128 + 16 * z1 + 4 * f, 4), ar(224 + 4 * tau, 4),
                        "0" if (f == 0 and z1 == T) else v(32 + 4 * T, 4)))
                    if T == 7 and f < 3 and tau < 4: g += bread(f + 1, tau)
                    M.append(g)
            for tau in range(4, 8):
                M[36 * f + 2 * (tau - 4) + (1 if f else 0)] += bread(f, tau)
        def pw(T): return DS("ds_write_b128 v3, %s offset:%d" % (v(32 + 4 * T, 4), exoff(T)), "pw%d" % T)
        def du(half):
            b = 64 + 8 * half
            g = [DS("ds_read_b128 %s, v25 offset:%d" % (v(80 + 4 * c, 4), c * UCH + 4096 * half), "du%d" % half) for c in range(2)]
            for c in range(2):
                for r in range(4):
                    g.append((WDS("du%d" % half) if c + r == 0 else []) + I("v_lshlrev_b32 v%d, 16, v%d" % (b + 4 * c + r, 80 + 4 * c + 3 - r)))
            for c in range(2):
                for r in range(4):
                    g.append(I("v_mul_f32 v%d, s%d, v%d" % (b + 4 * c + r, 62 + c, b + 4 * c + r)))
            return g
        def fin(half):
            g = [DS("ds_read_b128 %s, v%d offset:%d" % (v(80 + 4 * w, 4), (2, 31)[half], 1024 * w), "pr%d_%d" % (half, w)) for w in range(4)]
            b = 64 + 8 * half
            for w in range(4):
                c = w >> 1
                for q in range(2):
                    g.append((WDS("pr%d_%d" % (half, w)) if q == 0 else []) + I("v_pk_add_f32 %s, %s, %s" % (
                        v(b + 4 * c + 2 * q, 2), v(b + 4 * c + 2 * q, 2), v(80 + 4 * w + 2 * q, 2))))
            for r in range(4):
                g.append(I("v_cvt_pk_bf16_f32 v%d, v%d, v%d" % (96 + 4 * half + r, b + r, b + 4 + r)))
            for r in range(4):
                g.append(I("v_or_b32 v%d, 1, v%d" % (96 + 4 * half + r, 96 + 4 * half + r)))
            return g
        ldB = "buffer_load_dwordx2 v[126:127], v14, %s, 0 offen sc1" % WS
        fb = I("v_lshlrev_b32 v14, 5, v0\nv_add_u32 v14, %d, v14" % FLAGB) + VM(ldB, "flagB_ld")
        bx, by = C["bx"], C["by"]
        L = 108
        bw = C["bw"]
        M = weave(M, self.wgu_tr(0), 1, bw - 2)
        M[bw] += WDS("wtr0") + I("s_barrier")
        q = [(1, 0, g) for g in self.Q[n2:] + [self.flag_store(14, 124, "flagB_st")] + self.h2_clears("clr2")]
        q += [(bw + 1, 0, g) for g in self.wgu_dma(2)]
        n3 = C["q3_conv"]
        assert n3 % 2 == 0
        q += [(by + 1, 0, g) for g in self.wgu_dma(3)[:n3]] + [(C["fb_at"], 0, fb)]
        self.q3rest = self.wgu_dma(3)[n3:]
        wh = slots(M, [q], C["cgap"], 1)
        assert wh.get("wq1", 0) < bx
        M[bx] += WVM("wq1") + self.stamp("_bx") + I("s_barrier") + self.stamp("_bxb")
        M = weave(M, self.wgu_tr(1), bx + 1, by - 3)
        M[by] += WDS("wtr1") + self.stamp("_by") + I("s_barrier")
        M = weave(M, du(0), bw + 1, bx)
        M = weave(M, du(1), by + 1, L + 6)
        for T, at in ((0, 6), (1, 9), (2, 12), (3, 16), (4, 22), (5, 27), (6, 34)):
            M[L + at] += pw(T)
        M[L + 20] += self.stamp("_m128") + WDS("pw3") + I("s_barrier") + self.stamp("_m128b")
        for q in (20, 58, 84, 96, 108, 118): M[q] += self.stamp("_m%d" % q)
        M = weave(M, fin(0), L + 21, L + 36)
        p.add(flat([bread(0, tau) for tau in range(4)]))
        p.add(flat(M))
        p.add(self.stamp("_c7"))
        p.add(pw(7))
        p.wvm("clr2")
        p("s_waitcnt lgkmcnt(0)\ns_barrier")
        p.add(self.stamp("conv"))
        f1 = fin(1)
        f1[3] = f1[3] + VM("buffer_store_dwordx4 v[96:99], v12, %s, 0 offen sc1" % WS, "yy_st")
        p.add(flat(f1))
        p.vm("buffer_store_dwordx4 v[100:103], v13, %s, 0 offen sc1" % WS, "yy_st")
        p.add(self.stamp("yy_st"))
        p.add(flat(self.q3rest))
        p.wvm("flagB_ld")
        self.ldB = ldB

    def helper(self):
        o = self.p.out
        o("""
        L_helper:
        v_lshlrev_b32 v4, 2, v0
        v_lshrrev_b32 v14, 4, v0
        v_and_b32 v15, 15, v0
        v_mul_u32_u24 v8, 5376, v14
        v_mul_u32_u24 v9, 12, v15
        s_lshl_b32 s48, s52, 2
        s_add_u32 s48, s48, s53
        s_sub_u32 s48, s48, 28
        s_mul_i32 s49, s48, 192
        v_add3_u32 v8, v8, v9, s49
        v_mov_b32 v120, -1
        v_mov_b32 v121, -1
        v_mov_b32 v122, -1
        v_mov_b32 v123, -1
        %s
        %s
        %s
        s_waitcnt lgkmcnt(0)
        s_mov_b64 s[16:17], s[76:77]
        s_mov_b64 s[20:21], s[78:79]
        buffer_load_dword v5, v4, %s, 0 offen
        """ % (self.srd(16, 896), self.srd(20, 2408448), self.srd(4, WS_SIZE), SSH))
        o(self.common_setup())
        o("v_mov_b32 v21, 0\nv_mov_b32 v22, 0")
        for grp in self.x_loads() + self.h2_clears(None): o(txt(grp))
        if self.cfg["hdelay"]: o("s_waitcnt vmcnt(0)")
        o("s_cmp_ge_u32 s48, 28\ns_cbranch_scc1 L_h_rows\ns_mov_b32 s57, 0")
        for i in range(28):
            o("buffer_load_dwordx3 %s, v8, %s, s57 offen" % (v(128 + 4 * i, 3), SSK))
            if i < 27: o("s_add_u32 s57, s57, %d" % (16 * 5376))
        o(txt(self.stamp("_ubar")))
        o("s_waitcnt vmcnt(28)")
        o("v_lshlrev_b32 v10, 16, v5\nv_and_b32 v9, 0xffff0000, v5")
        for r in (10, 9):
            o("""
            v_mul_f32 v12, 0xbfb8aa3b, v%d
            v_exp_f32 v12, v12
            v_add_f32 v12, 1.0, v12
            v_rcp_f32 v12, v12
            v_mul_f32 v%d, v%d, v12
            """ % (r, r, r))
        o("""
        v_cvt_pk_bf16_f32 v5, v10, v9
        v_lshlrev_b32 v10, 16, v5
        v_and_b32 v9, 0xffff0000, v5
        v_and_b32 v12, 7, v0
        v_lshlrev_b32 v12, 8, v12
        v_lshrrev_b32 v13, 3, v0
        v_lshl_add_u32 v12, v13, 2, v12
        ds_write2_b32 v12, v10, v9 offset0:0 offset1:32
        v_lshlrev_b32 v12, 7, v14
        s_waitcnt lgkmcnt(0)
        s_barrier
        """)
        for q in range(7):
            o("ds_read_b128 %s, v12 offset:%d" % (v(32 + 4 * q, 4), 16 * q))
        o("s_waitcnt lgkmcnt(0)")
        for i in range(28):
            o("s_waitcnt vmcnt(%d)" % (27 - i))
            for m in range(3):
                o("v_lshlrev_b32 v%d, 16, v%d\nv_and_b32 v%d, 0xffff0000, v%d" % (64 + 2 * m, 128 + 4 * i + m, 65 + 2 * m, 128 + 4 * i + m))
            for m in range(3):
                if i == 0:
                    o("v_pk_mul_f32 %s, %s, v[32:33] op_sel:[0,0] op_sel_hi:[1,0]" % (v(72 + 2 * m, 2), v(64 + 2 * m, 2)))
                else:
                    o("v_pk_fma_f32 %s, %s, %s, %s op_sel:[0,%d,0] op_sel_hi:[1,%d,1]" % (
                        v(72 + 2 * m, 2), v(64 + 2 * m, 2), v(32 + (i & ~1), 2), v(72 + 2 * m, 2), i & 1, i & 1))
        o(txt(self.stamp("_bx")))
        o("""
        v_mul_u32_u24 v12, 384, v14
        v_mul_u32_u24 v13, 24, v15
        v_add_u32 v12, v12, v13
        ds_write_b64 v12, v[72:73] offset:4096
        ds_write_b64 v12, v[74:75] offset:4104
        ds_write_b64 v12, v[76:77] offset:4112
        v_min_u32 v12, 47, v0
        v_lshlrev_b32 v13, 2, v12
        v_lshlrev_b32 v12, 3, v12
        s_waitcnt lgkmcnt(0)
        s_barrier
        s_cmp_lg_u32 s3, 0
        s_cbranch_scc1 L_h_rows
        """)
        for q in range(16):
            o("ds_read_b64 %s, v12 offset:%d" % (v(32 + 2 * q, 2), 4096 + 384 * q))
            if q == 7: o("s_waitcnt lgkmcnt(0)")
        o("""
        v_add_u32 v9, s49, v13
        v_subrev_u32 v10, 896, v9
        v_cmp_gt_u32 vcc, 896, v10
        v_subrev_u32 v10, 3584, v9
        v_mov_b32 v9, 896
        v_cmp_gt_u32 s[58:59], v9, v10
        s_or_b64 vcc, vcc, s[58:59]
        v_cndmask_b32 v9, 0, 1.0, vcc
        s_waitcnt lgkmcnt(0)
        """)
        for q in range(1, 16):
            o("v_pk_add_f32 v[32:33], v[32:33], %s" % v(32 + 2 * q, 2))
        o("""
        v_cvt_pk_bf16_f32 v34, v32, v33
        v_lshlrev_b32 v32, 16, v34
        v_and_b32 v33, 0xffff0000, v34
        v_add_f32 v32, v32, v9
        v_add_f32 v33, v33, v9
        v_cvt_pk_bf16_f32 v35, v32, v33
        v_lshlrev_b32 v32, 16, v35
        v_and_b32 v33, 0xffff0000, v35
        s_lshl_b32 s57, s49, 1
        s_add_u32 s57, s57, %d
        s_add_u32 s58, s49, %d
        buffer_store_dwordx2 v[32:33], v12, %s, s57 offen sc1
        buffer_store_dword v34, v13, %s, s58 offen sc1
        L_h_rows:
        """ % (MOD, MODB, WS, WS))
        o("""
        s_waitcnt vmcnt(0) lgkmcnt(0)
        s_barrier
        s_add_u32 s50, s50, 1
        s_addc_u32 s51, s51, 0
        v_mov_b32 v124, s50
        v_mov_b32 v125, s51
        s_lshl_b32 s57, s2, 5
        s_add_u32 s57, s57, %d
        s_cmp_eq_u32 s3, 0
        s_cselect_b32 s57, s57, 0x%x
        v_mov_b32 v14, s57
        """ % (FLAGB, OOB))
        o(txt(self.flag_store(14, 124, None)))
        o(txt(self.stamp("_by")))
        if self.cfg["hpf"]:
            o("""
            s_sub_u32 s57, s53, 28
            s_lshl_b32 s57, s57, 2
            s_add_u32 s56, s57, s3
            s_and_b32 s57, s3, 1
            s_cmp_eq_u32 s57, 0
            s_cselect_b32 s8, s28, s32
            s_cselect_b32 s9, s29, s33
            %s
            s_lshr_b32 s57, s56, 1
            s_mul_i32 s57, s57, %d
            s_and_b32 s58, s52, 1
            s_mul_i32 s58, s58, 1792
            s_add_u32 s57, s57, s58
            s_add_u32 s57, s57, %d
            v_lshrrev_b32 v4, 4, v1
            v_mul_u32_u24 v4, 3584, v4
            v_and_b32 v5, 15, v1
            v_min_u32 v5, 13, v5
            v_lshl_add_u32 v4, v5, 7, v4
            """ % (self.srd(8, 1605632), 4 * 3584, 224 * 3584))
            for i in range(7):
                o("buffer_load_dword v%d, v4, %s, s57 offen" % (128 + i, SK))
                if i < 6: o("s_add_u32 s57, s57, %d" % (32 * 3584))
        o(txt(self.ln1()))
        o("v_lshlrev_b32 v14, 5, v0\nv_add_u32 v14, %d, v14\n%s\ns_waitcnt vmcnt(0)\n%s\ns_branch L_stageB" % (FLAGB, self.ldB, txt(self.stamp("yy_st"))))

    def stageB(self):
        p, C = self.p, self.cfg
        p("L_stageB:")
        p.add(self.spin("fb", [self.ldB], ["v_cmp_ne_u64 vcc, s[50:51], v[126:127]"]))
        p("""
        s_min_u32 s57, s3, 2
        s_mul_i32 s57, s57, 3072
        s_add_u32 m0, s57, %d
        s_add_u32 s57, s57, %d
        s_waitcnt lgkmcnt(0)
        s_barrier
        """ % (MODL, MOD))
        p.add(self.stamp("_fbbar"))
        for i in range(3):
            p.vm("buffer_load_dwordx4 v11, %s, s57 offen offset:%d sc1 lds" % (WS, 1024 * i), "mod")
        late3 = len(self.q3rest) > 0
        assert not (late3 and C["wd_w5"])
        w4 = flat(self.wgu_tr(2) + ([] if late3 else self.wgu_tr(3)))
        for i in range(8):
            w4 += self.unpack(32 + 2 * i, 112 + i)
        for i in range(8):
            w4 += I("v_pk_fma_f32 %s, %s, v[6:7], v[6:7] op_sel:[0,0,1] op_sel_hi:[1,0,1]" % (v(48 + 2 * i, 2), v(32 + 2 * i, 2)))
        w4 += I("""
        v_lshrrev_b32 v4, 1, v1
        v_min_u32 v4, 27, v4
        v_and_b32 v5, 1, v1
        s_mul_i32 s57, s3, 56
        v_add_u32 v4, s57, v4
        v_mul_u32_u24 v14, 9216, v4
        v_lshl_add_u32 v14, v5, 4, v14
        s_lshl_b32 s62, s52, 10
        s_lshl_b32 s58, s53, 5
        s_add_u32 s62, s62, s58
        s_and_b32 s58, s52, 4
        s_lshl_b32 s58, s58, 7
        s_add_u32 s62, s62, s58
        s_add_u32 s62, s62, %d
        s_add_u32 s63, s62, %d
        """ % (YY, 28 * 9216))
        p.add(w4 + self.wd_addr())
        p.add(self.stamp("_ln1"))
        p.wvm("mod")
        p.add(self.stamp("_modland"))
        ldY = ["buffer_load_dwordx4 v[104:107], v14, %s, s62 offen sc1" % WS,
               "buffer_load_dwordx4 v[108:111], v14, %s, s63 offen sc1" % WS]
        for l in ldY: p.vm(l, "yy")
        p("""
        v_min_u32 v25, 23, v24
        v_lshlrev_b32 v8, 5, v24
        v_lshlrev_b32 v9, 5, v25
        v_add_u32 v8, %d, v8
        v_add_u32 v9, %d, v9
        s_waitcnt lgkmcnt(0)
        s_barrier
        """ % (MODL, MODL + 1024))
        p.add(self.stamp("mod"))
        w5 = []
        for vec in range(5):
            for h in range(2):
                for q in range(2):
                    w5 += DS("ds_read_b128 %s, v%d offset:%d" % (v(168 + 16 * vec + 8 * h + 4 * q, 4), 8 + h, 1792 * vec + 16 * q), "m%d" % vec)
        w5 += I("""
        v_mul_u32_u24 v16, %d, v5
        v_lshl_add_u32 v16, v4, 2, v16
        v_add_u32 v16, %d, v16
        v_add_u32 v17, %d, v16
        v_add_u32 v18, 112, v16
        v_add_u32 v19, 112, v17
        v_lshrrev_b32 v4, 5, v0
        v_mul_u32_u24 v4, %d, v4
        v_add_u32 v4, %d, v4
        v_lshl_add_u32 v30, v24, 4, v4
        v_cmp_gt_u32 vcc, 24, v24
        v_lshl_add_u32 v31, v25, 4, v4
        v_add_u32 v31, 512, v31
        v_cndmask_b32 v12, 0, 1.0, vcc
        """ % (4 * BSP, BS, 2 * BSP, BSP, BS))
        w5 += WDS("m1")
        for i in range(8):
            w5 += I("v_pk_fma_f32 %s, %s, %s, %s" % (v(48 + 2 * i, 2), v(48 + 2 * i, 2), v(184 + 2 * i, 2), v(168 + 2 * i, 2)))
        w5 += WDS("m2")
        for i in range(8):
            w5 += I("v_pk_mul_f32 %s, %s, %s" % (v(48 + 2 * i, 2), v(48 + 2 * i, 2), v(200 + 2 * i, 2)))
        for i in range(4, 8):
            w5 += I("v_pk_mul_f32 %s, %s, v[12:13] op_sel_hi:[1,0]" % (v(48 + 2 * i, 2), v(48 + 2 * i, 2)))
        if late3: w5 += flat(self.wgu_tr(3))
        assert C["wd_w5"] <= 8
        p.add(flat(weave(singles(w5), [d for ks in range(C["wd_w5"]) for d in self.wd_dma(ks)])))
        p.add(self.stamp("_modc"))
        p.wvm("yy")
        p.add(self.stamp("_yy1"))
        p.add(self.spin("yy", ldY, self.phase(15, range(104, 112), 1)))
        p.add(self.stamp("yy_in"))
        for i in range(2):
            for q in range(2):
                p.ds("ds_write2_b32 v%d, v%d, v%d offset0:0 offset1:%d" % (16 + 2 * i + q, 104 + 4 * i + 2 * q, 105 + 4 * i + 2 * q, BSP // 4))
        p("s_waitcnt lgkmcnt(0)\ns_barrier")
        p.add(self.stamp("_ybar"))
        p.ds("ds_read_b128 v[104:107], v30", "y0")
        p.ds("ds_read_b128 v[108:111], v31", "y1")
        for i in range(8):
            if i % 4 == 0: p.wds("y%d" % (i // 4))
            p.add(self.unpack(80 + 2 * i, 104 + i))
            p("v_pk_fma_f32 %s, %s, %s, %s" % (v(32 + 2 * i, 2), v(48 + 2 * i, 2), v(80 + 2 * i, 2), v(32 + 2 * i, 2)))
        p.add(self.ln_stats(32, 64, 66))
        p.add(self.stamp("_ln2"))
        p("s_mov_b32 s57, %d" % H2)
        for h in range(2):
            for i in range(4 * h, 4 * h + 4):
                p("v_pk_fma_f32 %s, %s, v[64:65], v[64:65] op_sel:[0,0,1] op_sel_hi:[1,0,1]" % (v(48 + 2 * i, 2), v(32 + 2 * i, 2)))
            for i in range(4 * h, 4 * h + 4):
                p("v_pk_fma_f32 %s, %s, %s, %s" % (v(48 + 2 * i, 2), v(48 + 2 * i, 2), v(232 + 2 * i, 2), v(216 + 2 * i, 2)))
            for i in range(4 * h, 4 * h + 4):
                p("v_cvt_pk_bf16_f32 v%d, v%d, v%d" % (104 + i, 48 + 2 * i, 49 + 2 * i))
            p.vm("buffer_store_dwordx4 %s, v%d, %s, s57 offen sc1" % (v(104 + 4 * h, 4), 28 + h, WS), "h2_st")
        p.add(self.stamp("h2_st"))
        for i in range(8):
            p("v_cvt_pk_bf16_f32 v%d, v%d, v%d" % (112 + i, 32 + 2 * i, 33 + 2 * i))
        p("""
        s_lshl_b32 s57, s52, 3
        s_and_b32 s58, s53, 7
        s_add_u32 s57, s57, s58
        s_lshl_b32 s57, s57, 2
        s_lshr_b32 s58, s53, 3
        s_add_u32 s57, s57, s58
        s_lshl_b32 s57, s57, 2
        s_add_u32 s57, s57, s3
        s_lshl_b32 s57, s57, 5
        s_add_u32 s57, s57, %d
        v_mov_b32 v8, s57
        v_mov_b32 v6, s50
        v_mov_b32 v7, s51
        s_mov_b32 s49, %d
        """ % (FLAGC, X2))
        self.x2st = [VM("buffer_store_dwordx4 %s, v%d, %s, s49 offen sc1" % (v(112 + 4 * h, 4), 26 + h, WS), "x2_st") for h in range(2)]
        p("s_cmp_ge_u32 s53, 28\ns_cbranch_scc1 L_h_done")
        o = p.out
        o("L_h_done:\n" + txt(flat(self.x2st)))
        o("""
        s_lshr_b32 s57, s56, 2
        s_mul_i32 s57, s57, %d
        s_mul_i32 s58, s3, %d
        s_add_u32 s57, s57, s58
        v_lshrrev_b32 v4, 3, v1
        v_mul_u32_u24 v4, 896, v4
        v_and_b32 v5, 7, v1
        v_min_u32 v5, 6, v5
        v_lshl_add_u32 v4, v5, 7, v4
        s_waitcnt vmcnt(0)
        """ % (448 * 896, 8 * 896))
        o(txt(self.flag_store(8, 6, None)))
        if C["hpf"]:
            for i in range(14):
                o("buffer_load_dword v%d, v4, %s, s57 offen" % (128 + i, SD))
                if i < 13: o("s_add_u32 s57, s57, %d" % (32 * 896))
        o("s_cmp_lg_u32 s2, 255\ns_cbranch_scc1 L_exit\nv_mov_b32 v8, %d" % EPOCH)
        o(txt(self.flag_store(8, 6, None)))
        o("s_branch L_exit")

    def finish(self):
        p = self.p
        p("L_exit:")
        if self.probe:
            p("""
            s_waitcnt vmcnt(0)
            %s
            s_waitcnt lgkmcnt(0)
            s_sub_u32 s57, s98, s100
            s_mul_i32 s57, s57, 10
            s_cmp_ge_u32 s53, 28
            s_cselect_b32 s57, 0, s57
            s_add_u32 s57, s57, 6000
            L_probe:
            s_memrealtime s[58:59]
            s_waitcnt lgkmcnt(0)
            s_sub_u32 s58, s58, s100
            s_cmp_lt_u32 s58, s57
            s_cbranch_scc1 L_probe
            """ % ("s_memrealtime s[98:99]" if self.probe == "end" else "s_mov_b32 s98, s100" if self.probe == "none" else ""))
        if self.stamps:
            p("""
            s_waitcnt vmcnt(0) lgkmcnt(0)
            s_memrealtime s[64:65]
            s_add_u32 s4, s4, %d
            s_addc_u32 s5, s5, 0
            s_lshl_b32 s57, s2, 2
            s_add_u32 s57, s57, s3
            s_lshl_b32 s57, s57, 7
            v_mov_b32 v2, s57
            s_waitcnt lgkmcnt(0)
            """ % STAMP_OFF)
            regs = [100] + [68 + 2 * i for i in range(len(self.names) - 1)] + [64]
            for i, r in enumerate(regs):
                p("v_mov_b32 v3, s%d" % r)
                p("buffer_store_dword v3, v2, %s, 0 offen offset:%d" % (WS, 4 * i))
        p("L_end:")
        p("s_endpgm")

    def build(self):
        import gen2
        self.prologue(); self.p1(); self.conv(); self.helper(); self.stageB()
        gen2.ffn(self)
        self.finish()
        lines = self.p.resolve() + self.p.tail + ["L_code_end:", "s_endpgm"]
        lines, added = hz.fix(fmt(lines), verbose="-v" in sys.argv)
        name = NAME + "_kernel"
        head = open("head.txt").read()
        out = head + "; @launch grid=(256,1,1) block=(256,1,1) lds=%d\n" % LDS_BYTES + HEAD + entry(name) + "\n".join(lines) + "\n" + kd(name, 512, 102, 256)
        return out, added

def variant(spec, stamps=True):
    nm, drop, kv = (spec.split(":") + ["", ""])[:3]
    g = Gen(stamps)
    g.p.drop = drop or None
    for it in filter(None, kv.split(",")):
        k, val = it.split("=")
        g.cfg[k] = val.split("/") if k == "st" else eval(val.replace("/", ","))
    open("var_%s.s" % nm, "w").write(g.build()[0])
    open("var_%s.names" % nm, "w").write(" ".join(g.names + ["end"]))
    return "var_%s.s" % nm

if __name__ == "__main__":
    mode = sys.argv[1] if len(sys.argv) > 1 else "all"
    if mode == "var":
        for spec in sys.argv[2:]: variant(spec)
    elif mode == "probe":
        for nm in sys.argv[2:]:
            open("probe_%s.s" % nm, "w").write(Gen(False, nm).build()[0])
    else:
        for stamps, fn in ((False, "k.s"), (True, "k_st.s")):
            g = Gen(stamps)
            out, added = g.build()
            open(fn, "w").write(out)
            if stamps: open("k_st.names", "w").write(" ".join(g.names + ["end"]))
            print(fn, "nops added:", added, "lines:", out.count("\n"))
```

```python
from prog import *
from gen import *
import sys

def ffn(G):
    p, C = G.p, G.cfg
    g16 = C["g16"]
    assert not (g16 and (C["rot2"] or C["use_e"])) and (g16 or C["nfl"] < 2)
    rows = "s_mov_b32 s46, s15\ns_lshl2_add_u32 s13, s46, s3" if not g16 else """
    s_and_b32 s46, s15, -4
    s_lshr_b32 s59, s3, 1
    s_add_u32 s13, s46, s59
    s_and_b32 s59, s15, 1
    s_lshl1_add_u32 s13, s13, s59
    s_and_b32 s59, s3, 1
    s_lshl1_add_u32 s13, s13, s59"""
    g116 = C["g116"]
    assert g16 or not g116
    frag = """
    s_cmp_lg_u32 s0, 0
    s_cselect_b32 s57, 4, 0
    v_xor_b32 v12, v5, v10
    v_xor_b32 v12, s57, v12
    v_xor_b32 v13, 2, v12
    v_xor_b32 v14, 4, v12
    v_xor_b32 v15, 6, v12
    s_mul_i32 s59, s57, 96
    v_add_u32 v9, s59, v9
    v_lshl_add_u32 v12, v12, 4, v9
    v_lshl_add_u32 v13, v13, 4, v9
    s_lshl_b32 s59, s57, 5
    v_add_u32 v9, s59, v9
    v_lshl_add_u32 v14, v14, 4, v9
    v_lshl_add_u32 v15, v15, 4, v9
    s_mul_i32 s59, s57, 224
    s_sub_u32 s59, 512, s59
    v_add_u32 v28, s59, v12
    v_add_u32 v29, s59, v13
    s_sub_u32 s59, s59, 128
    v_add_u32 v30, s59, v14
    v_add_u32 v31, s59, v15
    """ if not g116 else """
    s_cmp_lg_u32 s0, 0
    s_cselect_b32 s57, 4, 0
    v_and_b32 v9, 15, v1
    v_mul_u32_u24 v9, 896, v9
    v_lshrrev_b32 v12, 4, v1
    v_xor_b32 v12, v12, v10
    v_xor_b32 v12, s57, v12
    v_xor_b32 v13, 4, v12
    s_mul_i32 s59, s57, 96
    v_add_u32 v9, s59, v9
    v_lshl_add_u32 v12, v12, 4, v9
    s_lshl_b32 s59, s57, 5
    v_add_u32 v9, s59, v9
    v_lshl_add_u32 v13, v13, 4, v9
    s_mul_i32 s59, s57, 224
    s_sub_u32 s59, 512, s59
    v_add_u32 v14, s59, v12
    s_sub_u32 s59, s59, 128
    v_add_u32 v15, s59, v13
    v_add_u32 v28, 6144, v3
    """
    a1 = I(("""
    s_mul_i32 s62, s12, %d
    s_mul_i32 s63, s3, 7168
    s_add_u32 s62, s62, s63
    s_add_u32 s62, s62, %d
    v_add_u32 v2, s63, v11
    s_lshl4_add_u32 s57, s12, s13
    s_lshl2_add_u32 s57, s57, s3
    s_lshl_b32 s57, s57, 5
    s_add_u32 s56, s57, %d
    v_and_b32 v4, 31, v1
    v_lshrrev_b32 v5, 5, v1
    v_bfe_u32 v10, v1, 1, 3
    v_mul_u32_u24 v9, 896, v4
    FRAG
    ROWS
    s_mul_i32 s65, s46, %d
    s_mul_i32 s59, s3, 28672
    s_add_u32 s65, s65, s59
    s_add_u32 s65, s65, %d
    s_mul_i32 s59, s10, 14336
    s_add_u32 s10, s65, s59
    s_sub_u32 s11, s65, s59
    s_add_u32 s11, s11, 14336
    s_mul_i32 s48, s13, %d
    s_lshl_b32 s59, s14, 7
    s_add_u32 s48, s48, s59
    v_mov_b32 v16, -1
    v_mov_b32 v17, -1
    v_mov_b32 v18, -1
    v_mov_b32 v19, -1
    """ % (4 * TILE, H2, FLAGD, 112 * 1024, HH, 8 * 896)).replace("ROWS", rows).replace("FRAG", frag))
    if g116:
        a1 += I("s_and_b32 s59, s15, 1\ns_lshl_b32 s59, s59, 2\ns_sub_u32 s59, s59, s3\ns_mul_i32 s59, s59, 14336\ns_add_u32 s65, s65, s59")
    def h2dma(t, single=False):
        g = []
        for i in range(7):
            pre, imm = [], (0 if single else 1024 * (i % 4))
            if imm == 0: pre = I("s_add_u32 m0, s63, %d\ns_add_u32 s57, s62, %d" % ((t % 2) * TILE + 1024 * i, t * TILE + 1024 * i), "h2_%d" % t)
            g.append(pre + VM("buffer_load_dwordx4 v11, %s, s57 offen offset:%d sc1 lds" % (WS, imm), "h2_%d" % t))
        return g
    def verify_items(t):
        g = []
        off = (t % 2) * TILE
        rounds = (tuple(range(7)),)
        base = 224
        for idx in rounds:
            for q, i in enumerate(idx):
                g.append((WVM("h2_%d" % t) if i == 0 else []) + DS("ds_read_b128 %s, v2 offset:%d" % (v(base + 4 * q, 4), off + 1024 * i), "vf%d_%d" % (t, i)))
            for q, i in enumerate(idx):
                b = base + 4 * q
                first = "v_max3_u32 v10, v%d, v%d, v%d\nv_max_u32 v10, v10, v%d" % (b, b + 1, b + 2, b + 3)
                nxt = "v_max3_u32 v10, v10, v%d, v%d\nv_max3_u32 v10, v10, v%d, v%d" % (b, b + 1, b + 2, b + 3)
                g.append(WDS("vf%d_%d" % (t, i)) + I(first if i == 0 else nxt, "vf%d_%d" % (t, i)))
        return g
    def plain(items): return ["s_waitcnt lgkmcnt(0)" if x[0] == "wds" else x[1] for x in items if x[0] != "wvm"]
    def verify_branch(t):
        cmp_ = ["v_cmp_eq_u32 vcc, -1, v10"]
        return G.spin("h%d" % t, ["s_mov_b32 s44, m0"] + plain(flat(h2dma(t))) + ["s_mov_b32 m0, s44"], plain(flat(verify_items(t))) + cmp_, cmp_)
    wd_dma = G.wd_dma
    def wd_tr(ks, dst=None, tag=None):
        g = []
        for t in range(2):
            kind, b = wd_reg(ks, t) if dst is None else ("v", dst + 4 * t)
            for i in range(2):
                g.append((WVM("wd%d" % ks) if (t == 0 and i == 0) else []) + DS("ds_read_b64_tr_b16 %s, %s offset:%d" % (
                    rr(kind, b + 2 * i, 2), "v23" if ks % 13 < 6 else "v0", (ks % 13 - (0 if ks % 13 < 6 else 6)) * 2048 + i * 1024 + t * 512), tag or "wt%d" % ks))
        return g
    def hread(t, ks):
        ad, off = (12, 128 * (ks // 4)) if ks < 14 else (28, 128 * (ks // 4) - (512 if ks % 4 < 2 else 384))
        return DS("ds_read_b128 %s, v%d offset:%d" % (v(HF + 4 * (ks % 4), 4), ad + ks % 4, (t % 2) * TILE + off), "hf%d_%d" % (t, ks))
    def epi1(t):
        A = ACC[t % 2]
        g = []
        if g116:
            for rh in range(2):
                B = A + 16 * rh
                for i in range(8): g.append(I("v_mul_f32 v%d, v%d, v%d" % (B + i, B + i, B + 8 + i), "epi"))
                for i in range(4): g.append(I("v_cvt_pk_bf16_f32 v%d, v%d, v%d" % (B + 8 + i, B + 2 * i, B + 2 * i + 1), "epi"))
                g.append(I("s_add_u32 s59, s61, %d" % (t * 112 * 1024 + rh * 57344)) + VM("buffer_store_dwordx4 %s, v11, %s, s59 offen sc1" % (v(B + 8, 4), WS), "hh_st%d" % t))
            return g
        for ph in range(2):
            for i in range(8 * ph, 8 * ph + 8):
                g.append(I("v_mul_f32 v%d, v%d, v%d" % (A + i, A + i, A + 16 + i), "epi"))
            for i in range(4):
                g.append(I("v_cvt_pk_bf16_f32 v%d, v%d, v%d" % (A + 16 + 4 * ph + i, A + 8 * ph + 2 * i, A + 8 * ph + 2 * i + 1), "epi"))
            pre = I("s_add_u32 s59, s61, %d" % (t * 112 * 1024)) if ph == 0 else []
            g.append(pre + VM("buffer_store_dwordx4 %s, v11, %s, s59 offen offset:%d sc1" % (v(A + 16 + 4 * ph, 4), WS, 1024 * ph), "hh_st%d" % t))
        return g
    def hh_clears():
        g = []
        for t in ((1,) if C["hclr"] else (1, 3) if C["use_e"] else (1, 2, 3)):
            g.append(I("s_add_u32 s66, s61, %d" % (t * 112 * 1024)) + VM("buffer_store_dwordx4 v[16:19], v11, %s, s66 offen sc1" % WS, "clr5"))
            if g116: g.append(I("s_add_u32 s66, s66, 57344") + VM("buffer_store_dwordx4 v[16:19], v11, %s, s66 offen sc1" % WS, "clr5"))
            else: g.append(VM("buffer_store_dwordx4 v[16:19], v11, %s, s66 offen offset:1024 sc1" % WS, "clr5"))
        return g
    def hhload(rt, ks):
        sr = ("s60", "s66")[rt]
        k = ks % 14
        pre = I("s_add_u32 %s, s%d, %d" % (sr, 10 + ks // 14, rt * 2 * 112 * 1024 + 1024 * k)) if k % 4 == 0 else []
        return pre + VM("buffer_load_dwordx4 %s, v11, %s, %s offen offset:%d sc1" % (ar(4 * (28 * rt + ks), 4), WS, sr, 1024 * (k % 4)), "hh%d_%d" % (rt, ks))
    def hhcheck(rt, lo, n):
        b = 4 * (28 * rt + lo)
        rd = ["v_accvgpr_read_b32 v%d, a%d" % (16 + i, b + 4 * i + 3) for i in range(n)]
        ck = {2: ["v_max_u32 v10, v16, v17"], 4: ["v_max3_u32 v10, v16, v17, v18", "v_max_u32 v10, v10, v19"]}[n] + ["v_cmp_eq_u32 vcc, -1, v10"]
        assert lo // 14 == (lo + n - 1) // 14
        rl = ["s_add_u32 s57, s%d, %d" % (10 + lo // 14, rt * 2 * 112 * 1024 + 1024 * (lo % 14))] + [
            "buffer_load_dwordx4 %s, v11, %s, s57 offen offset:%d sc1" % (ar(b + 4 * i, 4), WS, 1024 * i) for i in range(n)]
        return WVM("hh%d_%d" % (rt, lo + n - 1)) + I("\n".join(rd + ck[:-1])) + G.spin("q%d_%d" % (rt, lo), rl, rd + ck, ck[-1:])

    n0 = C["wd_w5"]
    n1 = n0 + C["wd_post"]
    assert n1 <= (8 if (g16 and C["recyc"]) else 6) and (n1 <= 6 or n0 >= 2)
    n6 = min(C["q_w6"], len(G.q23))
    assert n6 % 2 == 0
    if C["x2_at"] == 0: p.add(flat(G.x2st))
    if not G.q2_early:
        p.wvm("wq2")
        p("s_barrier")
    p.add(flat(weave(G.wgu_tr(2), G.q23[:n6])))
    pre_tr = n1 > 6
    if pre_tr:
        import gen3
        p.add(flat(gen3.wtr(G, 0)))
    p.add(a1)
    early3 = n6 == len(G.q23)
    assert early3 or G.nq(0) >= 7
    if early3: p.wvm("wq3")
    p("s_waitcnt lgkmcnt(0)\ns_barrier")
    p.add(G.stamp("_w6"))
    p.wvm("h2_st")
    p.add(G.stamp("h2_ack"))
    p.add(flat(h2dma(0)))
    post = G.q23[n6:] + (G.x2st if C["x2_at"] == 1 else []) + [d for ks in range(n0, n1) for d in wd_dma(ks)]
    p.add(flat(weave(G.wgu_tr(3), post)) if early3 else flat(post))
    p.add(G.stamp("_h2req"))
    p.wvm("h2_0")
    p.add(G.stamp("_h2land"))
    p.add(flat(verify_items(0)))
    p.add(verify_branch(0))
    p.add(G.stamp("_h2ok"))
    p.wvm("wq3")
    p("s_waitcnt lgkmcnt(0)\ns_barrier")
    p.add(G.stamp("h2_in"))
    def hread16(t, ph, si):
        s_, rh = 2 * (ph // 2) + si, ph % 2
        ad, off = (12, 128 * (s_ // 2)) if s_ < 7 else (14, 128 * (s_ // 2) - (512, 384)[s_ % 2])
        return DS("ds_read_b128 %s, v%d offset:%d" % (v(HF + 8 * (ph % 2) + 4 * si, 4), ad + s_ % 2, (t % 2) * TILE + rh * 14336 + off), "hf%d_%d_%d" % (t, ph, si))
    if g116: p.add(hread16(0, 0, 0) + hread16(0, 0, 1))
    else:
        for ks in range(3): p.add(hread(0, ks))
    e0, e1 = C["epi"]
    S = []
    for t in range(4 if g116 else 0):
        for ph in range(14):
            B = ACC[t % 2] + 16 * (ph % 2)
            for a in range(4):
                for si in range(2):
                    s_ = 2 * (ph // 2) + si
                    grp = (WDS("hf%d_%d_1" % (t, ph)) if a + si == 0 else []) + I("v_mfma_f32_16x16x32_bf16 %s, %s, %s, %s" % (
                        v(B + 4 * a, 4), ar(16 * s_ + 4 * a, 4), v(HF + 8 * (ph % 2) + 4 * si, 4), "0" if s_ == 0 else v(B + 4 * a, 4)))
                    if a + si == 0:
                        if ph < 13: grp += hread16(t, ph + 1, 0) + hread16(t, ph + 1, 1)
                        elif t < 3: grp += FENCE("vf") + verify_branch(t + 1) + I("s_barrier", "gbar") + hread16(t + 1, 0, 0) + hread16(t + 1, 0, 1)
                    S.append(grp)
    for t in range(0 if g116 else 4):
        A = ACC[t % 2]
        for ks in range(28):
            for X in range(2):
                pre = WDS("hf%d_%d" % (t, ks)) if X == 0 else []
                grp = pre + I("v_mfma_f32_32x32x16_bf16 %s, %s, %s, %s" % (
                    v(A + 16 * X, 16), ar(8 * ks + 4 * X, 4), v(HF + 4 * (ks % 4), 4), "0" if ks == 0 else v(A + 16 * X, 16)))
                if X == 0:
                    if ks + 3 < 28: grp += hread(t, ks + 3)
                    elif t < 3:
                        if ks == 25:
                            grp += FENCE("vf") + verify_branch(t + 1) + WDS("hf%d_27" % t) + I("s_barrier", "gbar")
                        grp += DS("ds_read_b128 %s, v%d offset:%d" % (v(HF + 4 * ((ks + 3) % 4), 4), 12 + (ks + 3) % 4,
                                  ((t + 1) % 2) * TILE), "hf%d_%d" % (t + 1, ks - 25))
                S.append(grp)
    def g2order(rt):
        k0 = 28 - (C["skew"] if rt else 0)
        return [(ks, t) for ks in range(k0) for t in range(2)] + [(ks, t) for t in range(2) for ks in range(k0, 28)]
    def g2m(rt):
        A = ACC[rt]
        order = g2order(rt)
        late = [x for x in order if x[0] >= 22]
        M = []
        for ks, t in order:
            if ks < 22:
                pre = WDS("wt%d" % ks)
                kind, b = wd_reg(ks, t)
            else:
                pre = WDS("wl%d_%d_%d" % (rt, ks, t))
                kind, b = "v", HF + 4 * (late.index((ks, t)) % 4)
            M.append(pre + I("v_mfma_f32_32x32x16_bf16 %s, %s, %s, %s" % (
                v(A + 16 * t, 16), rr(kind, b, 4), ar(4 * (28 * rt + ks), 4), "0" if ks == 0 else v(A + 16 * t, 16))))
        for n, (ks, t) in enumerate(late):
            at = order.index(late[n - 4]) if n >= 4 else order.index(late[0]) - 4 + n
            M[at] += WVM("wd%d" % ks) + flat(wd_tr(ks, HF + 4 * (n % 4) - 4 * t, "wl%d_%d_%d" % (rt, ks, t))[2 * t:2 * t + 2])
        return M
    def nan_net(rt):
        o = p.out
        o("""
        L_g{r}_nan:
        s_mov_b32 s67, 0
        s_add_u32 s57, s65, {base}
        s_add_u32 s44, s57, 28672
        L_g{r}_next:
        buffer_load_dwordx4 v[16:19], v11, {ws}, s57 offen sc1
        s_waitcnt vmcnt(0) lgkmcnt(0)
        v_max3_u32 v10, v16, v17, v18
        v_max_u32 v10, v10, v19
        v_cmp_eq_u32 vcc, -1, v10
        s_cbranch_vccz L_g{r}_adv
        s_add_u32 s67, s67, 1
        s_cmp_lt_u32 s67, {spin}
        s_cbranch_scc1 L_g{r}_next
        L_g{r}_adv:
        s_add_u32 s57, s57, 1024
        s_cmp_lt_u32 s57, s44
        s_cbranch_scc1 L_g{r}_next
        """.format(r=rt, base=rt * 2 * 112 * 1024, ws=WS, spin=SPIN))
        for ks in range(28): o(txt(hhload(rt, ks)))
        o("s_waitcnt vmcnt(0)")
        o("\n".join(plain(flat(g2m(rt)))))
        o("s_nop 15")
        if rt and C["skew"]: o(txt(flat(red_write(1)[:4])))
        o("s_branch L_g%d_ok" % rt)
        return I("v_cmp_u_f32 vcc, v%d, v%d\ns_cbranch_vccnz L_g%d_nan\nL_g%d_ok:" % (ACC[rt] + 16, ACC[rt] + 16, rt, rt))
    def red_write(rt):
        A = ACC[rt]
        return [DS("ds_write_b128 v2, %s offset:%d" % (v(A + 16 * t + 4 * q, 4), 128 * t + 32 * q), "rw%d" % rt)
                for t in range(2) for q in range(4)]
    def red_final(rt):
        b = ACC[rt]
        g = []
        for w in range(4):
            for q in range(2):
                ad, off = 5, w * (16 * REDP if g16 else REDW)
                g.append(DS("ds_read_b128 %s, v%d offset:%d" % (v(b + 8 * w + 4 * q, 4), ad, off + 16 * q), "rd%d_%d" % (rt, w)))
        for w in range(1, 4):
            for i in range(4):
                op = ("v_pk_add_f32 %s, %s, %s" % (v(b + 2 * i, 2), v(b + 2 * i, 2), v(b + 8 * w + 2 * i, 2)) if rt else
                      "\n".join("v_add_f32 v%d, v%d, v%d" % (b + k, b + k, b + 8 * w + k) for k in (2 * i, 2 * i + 1)))
                g.append((WDS("rd%d_%d" % (rt, w)) if i == 0 else []) + I(op))
        u = ACC[0] + 8
        if rt == 0:
            g.append(I("s_barrier") + MARK("redfree"))
            for i in range(4):
                g.append((WVM("x2") if i == 0 else []) + G.unpack(u + 2 * i, 12 + i))
                g.append(G.unpack(u + 8 + 2 * i, 24 + i))
        for i in range(4):
            g.append(I("v_pk_fma_f32 %s, %s, %s, %s" % (v(b + 2 * i, 2), v(b + 2 * i, 2), v(u + 2 * i, 2), v(u + 8 + 2 * i, 2)) if rt else
                       "\n".join("v_fma_f32 v%d, v%d, v%d, v%d" % (b + k, b + k, u + k, u + 8 + k) for k in (2 * i, 2 * i + 1))))
        for i in range(4):
            g.append(I("v_cvt_pk_bf16_f32 v%d, v%d, v%d" % (b + 24 + i, b + 2 * i, b + 2 * i + 1)))
        g.append(VM("buffer_store_dwordx4 %s, v4, %s, s48 offen %s" % (v(b + 24, 4), SO, C["outflag"]), "out"))
        if rt == 0:
            g.append(I("s_add_u32 s48, s48, %d" % (2 * TILE)))
            for i in range(4): g.append((WVM("x2b") if i == 0 else []) + G.unpack(u + 8 + 2 * i, 28 + i))
        return g
    if not g16: S += g2m(0) + g2m(1)
    ack, fl, use_e = C["ack"], C["flat"], C["use_e"]
    flagck = ["v_cmp_ne_u64 vcc, s[50:51], v[20:21]"]
    ldF = "buffer_load_dwordx2 v[20:21], v9, %s, 0 offen sc1" % WS
    addrC = I("""
    s_lshl_b32 s45, s13, 7
    s_add_u32 s45, s45, %d
    v_and_b32 v9, 3, v1
    v_lshl_add_u32 v9, v9, 5, s45
    v_bfe_u32 v22, v1, 2, 1
    v_lshl_add_u32 v9, v22, 10, v9
    s_lshr_b32 s45, s46, 2
    s_lshl_b32 s45, s45, 6
    s_mul_i32 s47, s3, 14
    s_add_u32 s45, s45, s47
    s_lshl_b32 s45, s45, 5
    s_add_u32 s45, s45, %d
    v_min_u32 v22, 13, v1
    v_lshl_add_u32 v22, v22, 5, s45
    v_cmp_gt_u32 s[0:1], 16, v1
    s_nop 1
    v_cndmask_b32 v9, v9, v22, s[0:1]
    """ % (FLAGC, FLAGD))
    if C["hclr"]:
        assert not use_e
        addrC += I("""
        s_lshr_b32 s45, s46, 2
        s_lshl_b32 s45, s45, 6
        s_add_u32 s45, s45, %d
        v_and_b32 v22, 1, v1
        v_lshl_add_u32 v22, v22, 5, s45
        v_cmp_le_u32 s[0:1], 32, v1
        s_nop 1
        v_cndmask_b32 v9, v9, v22, s[0:1]
        s_lshl_b32 s47, s12, 6
        s_add_u32 s47, s47, %d
        s_sub_u32 s47, s47, s45
        v_add_u32 v22, s47, v22
        v_cmp_le_u32 s[0:1], 48, v1
        s_nop 1
        v_cndmask_b32 v9, v9, v22, s[0:1]
        """ % (FLAGH, FLAGH))
    addrD = I("""
    v_add_u32 v9, 8, v22
    v_lshrrev_b32 v16, 3, v1
    v_and_b32 v17, 7, v1
    v_mul_u32_u24 v18, 896, v16
    v_lshl_add_u32 v18, v17, 4, v18
    v_lshlrev_b32 v22, 4, v17
    s_lshl_b32 s49, s14, 7
    s_add_u32 s49, s49, %d
    s_add_u32 s45, s48, %d
    s_add_u32 s47, s45, %d
    """ % (MODB + 5 * 896, X2, 2 * TILE))
    addrR = I("""
    v_mul_u32_u24 v2, %d, v4
    v_lshl_add_u32 v2, v5, 4, v2
    s_mul_i32 s62, s3, %d
    v_add_u32 v2, s62, v2
    v_mul_u32_u24 v5, %d, v16
    v_lshl_add_u32 v5, v17, 5, v5
    s_mul_i32 s62, s3, %d
    v_add_u32 v5, s62, v5
    v_mov_b32 v4, v18
    """ % (REDP, REDW, REDP, 8 * REDP))
    if g16:
        import gen3
        return gen3.tail16(G, S, locals())
    F = Sched(S, C["bud32"], 3)
    qst, qh2, qwd, qhh, qfl = [], [], [], [], []
    for t in range(4):
        e = epi1(t)
        b0 = 56 * (t + 1)
        lo, hi = (b0 + e0, b0 + e1) if t < 3 else (b0 + 1, b0 + C["e3"])
        half = (lo + hi) // 2
        F.spread("epi", e[:12] + [MARK("e%da" % t)], lo, half)
        F.spread("epi", e[13:25] + [MARK("e%db" % t)], half, hi)
        dl = b0 if (t < 2 and C["h2first"]) else 0
        qst += [(half, dl, NEED("e%da" % t) + (WVM("clr5") if t == 1 else NEED("okC") if t == 2 else []) + e[12]), (hi, dl, NEED("e%db" % t) + e[25])]
    for t in range(3):
        qh2 += [(max(0, 56 * t - 4), 56 * t - 4, g) for g in h2dma(t + 1, True)]
    cl = hh_clears()
    cl[-1] = cl[-1] + MARK("clr")
    c0, cs = C["clr_at"]
    xa = C["x2_at"]
    qmisc = [(c0 + cs * k, 30, g) for k, g in enumerate(cl)]
    if xa >= 2: qmisc = sorted([(xa, 14, G.x2st[0]), (xa, 14, G.x2st[1] + MARK("x2out"))] + qmisc, key=lambda x: x[0])
    else: F.at("adr", 0, MARK("x2out"))
    for ks in range(n1, 28):
        d = wd_dma(ks)
        if ks >= 13: d[0] = WDS("wt%d" % (ks - 13)) + d[0]
        if ks == 6 and not early3: d[0] = NEED("b3") + d[0]
        for g in d: qwd.append((0 if ks < 13 else 30 + 5 * (ks - 13), 40 + 4 * ks if ks < C["wd_late"] else C["wd_dl"], g))
    fD = 56 + e1 + ack
    ldC, ckC = C["fc"]
    r1 = 224 + C["rt1_start"]
    qfl.append((C["fc_st"], 0, WVM("x2_st") + G.flag_store(8, 6, "flagC_st")))
    qfl.append((fD, 0, I("v_mov_b32 v8, s56") + WVM("clr5") + WVM("hh_st0") + G.flag_store(8, 6, "flagD_st")))
    qfl.append((ldC, 0, NEED("aC") + VM(ldF, "flagC_ld")))
    qx = [(ckC + 6, 170, NEED("aD") + VM("buffer_load_dwordx4 v[24:27], v18, %s, s45 offen sc1" % WS, "x2")),
          (C["gb_at"], C["gb_at"] + 30, VM("buffer_load_dwordx4 v[12:15], v22, %s, s49 offen sc1" % WS, "x2")),
          (C["x2b_at"], C["x2b_at"] + 30, NEED("aR") + VM("buffer_load_dwordx4 v[28:31], v4, %s, s47 offen sc1" % WS, "x2b"))]
    if use_e:
        fE = 168 + e1 + ack
        qfl.append((fE, 0, WVM("hh_st2") + I("s_mov_b64 exec, 1") + VM("buffer_store_dwordx2 v[6:7], v8, %s, 0 offen offset:8 sc1" % WS, "flagE_st") + I("s_mov_b64 exec, -1")))
        qfl.append((r1 - 1 - C["flat"], 0, NEED("aD") + VM(ldF, "flagE_ld")))
    for ks in range(28): qhh.append((max(C["rt0_start"], 168 + ks + 3), 200 + 2 * ks, (NEED("okC") if ks == 0 else []) + hhload(0, ks)))
    for ks in range(28): qhh.append((r1, 256 + 2 * ks, ((NEED("okE") if use_e else []) + (WVM("hh_st3") if C["gate3"] else []) if ks == 0 else []) + hhload(1, ks)))
    wh = F.requests([qst, qfl, qh2, qmisc, qx, qwd, qhh], lambda i: (C["gap0"] if (i + 4) % 56 < 14 else C["gap1"] + C["gapt"][i // 56]) if i < 164 else C["gap3"] if r1 <= i < r1 + C["burst"] else C["gap2"])
    F.spread("adr", singles(addrC)[:-3] + [addrC[-3:] + MARK("aC")], 76, 92)
    F.at("adr", ckC, WVM("flagC_ld") + G.spin("fc", [ldF], flagck) + MARK("okC"))
    F.spread("adr", [NEED("clr") + NEED("x2out")] + singles(addrD) + [MARK("aD")], ckC + 1, ckC + 5)
    F.spread("adr", singles(addrR) + [MARK("aR")], 186, 200)
    if use_e: F.at("adr", r1 - 1, WVM("flagE_ld") + G.spin("fe", [ldF], flagck) + MARK("okE"))
    for t in range(3):
        F.spread("vf", verify_items(t + 1), 56 * t + C["vf_at"], 56 * t + C["vf_at"] + 4)
    if not early3:
        F.spread("tr", G.wgu_tr(3), 0, 12)
        F.at("tr", 14, WDS("wtr3") + I("s_barrier") + MARK("b3"))
        S[42] = WDS("wtr3") + S[42]
    at = 16
    for ks in range(22):
        at = max(at, wh.get("wd%d" % ks, -100) + C["wd_lat"], 164 if ks >= 18 else 0)
        F.spread("tr", ([NEED("x2out")] if ks == 4 else []) + wd_tr(ks), at, at + 3)
        at += 3
    for rt in range(2):
        groups = [(0, 2), (2, 4), (6, 4), (10, 4), (14, 4), (18, 4), (22, 4), (26, 2)]
        for lo, n in groups:
            use = 224 + 56 * rt + g2order(rt).index((lo, 0))
            F.at("vf", use - (C["ck0"] if rt == 0 else 1 if (lo == 0 and C["bubble"]) else C["ck1"]), (NEED("aR") if rt + lo == 0 else []) + hhcheck(rt, lo, n))
            S[use] = FENCE("vf") + S[use]
    F.at("red", C["rbar"], I("s_barrier"))
    if C["bubble"]:
        S[279] = S[279] + FENCE("red") + nan_net(0) + flat(red_write(0))
        F.at("red", 284, WDS("rw0") + I("s_barrier"))
        F.spread("red", red_final(0), 285, 320)
    else:
        S[283] = S[283] + FENCE("red", "vf") + nan_net(0)
        F.spread("red", red_write(0), 284, 299)
        F.at("red", 300, WDS("rw0") + I("s_barrier"))
        F.spread("red", red_final(0), 301, C["rf_end"])
    if C["skew"]: F.spread("epi", [NEED("redfree")] + red_write(1)[:4], 336 - C["skew"] + 1, 336 - C["skew"] + 6)
    for t, nm in enumerate(("g1_0", "_g1_1", "_g1_2", "g1_3", "g2_0")): S[56 * t + 55] += G.stamp(nm)
    for k in range(7, 336, 7): S[k - 1] += G.stamp("_p%d" % k)
    p.add(F.run(["vm", "vf", "epi", "adr", "tr", "red"], "ffn" if "-w" in sys.argv else None))
    wh = F.where
    if "-w" in sys.argv: print(sorted(wh.items(), key=lambda x: x[1]))
    for t in range(4): assert wh["hh_st%d" % t] < 56 * (t + 2) - 2
    assert wh["wd27"] < 260 and wh["aR"] < 216
    p.add(nan_net(1))
    p.add(G.stamp("g2_1"))
    p.add(flat(red_write(1)[4 if C["skew"] else 0:]))
    p("s_waitcnt lgkmcnt(0)\ns_barrier")
    p.add(flat(red_final(1)))
```

```python
import sys
from prog import *
from gen import *

SUB = 4 * 16 * REDP

def wreg(s, mt):
    if s < 2: return ar(224 + 16 * s + 4 * mt, 4), "a", 224 + 16 * s + 4 * mt
    if s < 11: return v(112 + 16 * (s - 2) + 4 * mt, 4), "v", 112 + 16 * (s - 2) + 4 * mt
    return ar(168 + 16 * (s - 11) + 4 * mt, 4), "a", 168 + 16 * (s - 11) + 4 * mt

def wtr(G, s):
    sl = 2 * G.pairs()[s]
    ad, off = ("v23", sl * 2048) if sl < 6 else ("v0", (sl - 6) * 2048)
    g = []
    for mt in range(4):
        _, kind, b = wreg(s, mt)
        for i in range(2):
            g.append((WVM("wd%d" % (2 * s + 1)) if mt + i == 0 else []) + DS("ds_read_b64_tr_b16 %s, %s offset:%d" % (
                rr(kind, b + 2 * i, 2), ad, off + i * (2048 if G.cfg["g116"] else 1024) + (mt >> 1) * 512 + (mt & 1) * 32), "wt%d" % s))
    return g

def tail16(G, S, L):
    p, C = G.p, G.cfg
    epi1, h2dma, hh_clears, wd_dma, verify_items, red_final, plain = (L[k] for k in (
        "epi1", "h2dma", "hh_clears", "wd_dma", "verify_items", "red_final", "plain"))
    addrC, addrD, ldF, flagck, n1, early3, e0, e1, ack = (L[k] for k in (
        "addrC", "addrD", "ldF", "flagck", "n1", "early3", "e0", "e1", "ack"))
    g116 = C["g116"]
    P = (lambda x: int(2 * x)) if g116 else (lambda x: int(x) if x < 224 else int(224 + 2 * (x - 224)))
    G2 = P(224)
    hv, hs, hg = ("v11", 1024, 4) if g116 else ("v9", 2048, 2)
    hreg = lambda q, s: 4 * (14 * (q % 3) + s)
    def hload(q, s, sr="s60", force=False):
        pre = I("s_add_u32 %s, s65, %d" % (sr, q * 112 * 1024 + hs * s)) if (s % hg == 0 or force) else []
        return pre + VM("buffer_load_dwordx4 %s, %s, %s, %s offen offset:%d sc1" % (ar(hreg(q, s), 4), hv, WS, sr, 0 if force else hs * (s % hg)), "hh%d_%d" % (q, s))
    def hcheck(q, lo, n):
        rd = ["v_accvgpr_read_b32 v%d, a%d" % (16 + i, hreg(q, lo + i) + 3) for i in range(n)]
        ck = ["v_max3_u32 v10, v16, v17, v18" if n > 2 else "v_max_u32 v10, v16, v17"] + (["v_max_u32 v10, v10, v19"] if n == 4 else []) + ["v_cmp_eq_u32 vcc, -1, v10"]
        rl = [x[1] for i in range(n) for x in hload(q, lo + i, "s57", True)]
        return WVM("hh%d_%d" % (q, lo + n - 1)) + I("\n".join(rd + ck[:-1])) + G.spin("q%d_%d" % (q, lo), rl, rd + ck, ck[-1:])
    acc = lambda q, mt: ACC[q >> 1] + 16 * (q & 1) + 4 * mt
    order, s0 = [], 0
    for c in C["chains"]:
        order += [(s, mt) for mt in range(4) for s in range(s0, s0 + c)]
        s0 += c
    assert s0 == 14
    def sub(q):
        M = []
        for s, mt in order:
            pre = (WVM("hh%d_%d" % (q, s)) if (q <= C["nfl"] and mt == 0) else []) + (WDS("wt%d" % s) if (q == 0 and mt == 0) else [])
            M.append(pre + I("v_mfma_f32_16x16x32_bf16 %s, %s, %s, %s" % (
                v(acc(q, mt), 4), wreg(s, mt)[0], ar(hreg(q, s), 4), "0" if s == 0 else v(acc(q, mt), 4))))
        return M
    def rwrite(q, mt): return DS("ds_write_b128 v2, %s offset:%d" % (v(acc(q, mt), 4), (q % 3) * SUB + 64 * mt), "rw%d" % q)
    def nan_net(q):
        o = p.out
        o("""
        L_g{r}_nan:
        s_mov_b32 s67, 0
        s_add_u32 s57, s65, {base}
        s_add_u32 s44, s57, {tot}
        L_g{r}_next:
        buffer_load_dwordx4 v[32:35], {hv}, {ws}, s57 offen sc1
        s_waitcnt vmcnt(0) lgkmcnt(0)
        v_max3_u32 v32, v32, v33, v34
        v_max_u32 v32, v32, v35
        v_cmp_eq_u32 vcc, -1, v32
        s_cbranch_vccz L_g{r}_adv
        s_add_u32 s67, s67, 1
        s_cmp_lt_u32 s67, {spin}
        s_cbranch_scc1 L_g{r}_next
        L_g{r}_adv:
        s_add_u32 s57, s57, {hs}
        s_cmp_lt_u32 s57, s44
        s_cbranch_scc1 L_g{r}_next
        """.format(r=q, base=q * 112 * 1024, ws=WS, spin=SPIN, tot=14 * hs, hv=hv, hs=hs))
        for s in range(14): o(txt(hload(q, s, "s57")))
        o("s_waitcnt vmcnt(0)")
        o(txt(flat(sub(q))))
        o("s_nop 7")
        o(txt(flat([rwrite(q, mt) for mt in range(3)])))
        o("s_branch L_g%d_ok" % q)
        return I("v_cmp_u_f32 vcc, v%d, v%d\ns_cbranch_vccnz L_g%d_nan\nL_g%d_ok:" % (acc(q, 3), acc(q, 3), q, q))
    addrH = I("""
    v_lshrrev_b32 v9, 4, v1
    v_and_b32 v19, 15, v1
    v_lshlrev_b32 v9, 5, v9
    s_and_b32 s62, s15, 1
    s_lshl_b32 s62, s62, 4
    v_add3_u32 v9, v9, v19, s62
    v_lshlrev_b32 v9, 4, v9
    """)
    if g116: addrH = I("v_and_b32 v19, 15, v1")
    addrR = I("""
    v_mul_u32_u24 v2, %d, v19
    v_lshrrev_b32 v5, 4, v1
    v_lshl_add_u32 v2, v5, 4, v2
    s_mul_i32 s62, s3, %d
    v_add_u32 v2, s62, v2
    v_mul_u32_u24 v5, %d, v16
    v_lshl_add_u32 v5, v17, 5, v5
    s_lshr_b32 s62, s3, 1
    s_mul_i32 s63, s62, %d
    v_add_u32 v5, s63, v5
    s_mul_i32 s63, s62, %d
    s_sub_u32 s63, %d, s63
    s_and_b32 s62, s3, 1
    s_mul_i32 s62, s62, %d
    v_add_u32 v5, s62, v5
    v_mov_b32 v4, v18
    """ % (REDP, 16 * REDP, REDP, SUB, 3 * SUB, 2 * SUB, 8 * REDP))
    for q in range(4): S += sub(q)
    wide = lambda i: i < 224 and not g116
    F = Sched(S, lambda i: C["bud32"] if wide(i) else C["bud16"], lambda i: 3 if wide(i) else 6)
    F.lead = lambda i: 1 if wide(i) else 3
    qst, qh2, qwd, qhh, qfl = [], [], [], [], []
    nfl = C["nfl"]
    assert C["hclr"]
    wclr = [] if nfl else WVM("clr5")
    for t in range(4):
        e = epi1(t)
        b0 = 56 * (t + 1)
        lo, hi = (P(b0 + e0), P(b0 + (e1 if t < 2 else C["e2"]))) if t < 3 else (P(b0 + 1), P(b0 + C["e3"]))
        half = (lo + hi) // 2
        F.spread("epi", e[:12] + [MARK("e%da" % t)], lo, half)
        F.spread("epi", e[13:25] + [MARK("e%db" % t)], half, hi)
        dl = b0 if (t < 2 and C["h2first"]) else 0
        qst += [(half, dl, NEED("e%da" % t) + (wclr if t == 1 else NEED("okC") if t == 2 else []) + e[12]), (hi, dl, NEED("e%db" % t) + e[25])]
    for t in range(3):
        qh2 += [(P(max(0, 56 * t - (2 if g116 else 4))), 56 * t - 4, g) for g in h2dma(t + 1, not g116)]
    cl = [] if nfl else hh_clears()
    if cl: cl[-1] = cl[-1] + MARK("clr")
    else: F.at("adr", 0, MARK("clr"))
    c0, cs = C["clr_at"]
    xa = C["x2_at"]
    qmisc = [(P(c0 + cs * k), 30, g) for k, g in enumerate(cl)]
    if xa >= 2: qmisc = sorted([(P(xa), 14, G.x2st[0]), (P(xa), 14, G.x2st[1] + MARK("x2out"))] + qmisc, key=lambda x: x[0])
    else: F.at("adr", 0, MARK("x2out"))
    for ks in range(n1, 28):
        d = wd_dma(ks, g116)
        pr = G.pairs()
        prev = [s for s in range(ks // 2) if pr[s] == pr[ks // 2]]
        if prev: d[0] = WDS("wt%d" % prev[-1]) + d[0]
        if ks == 2 * pr.index(3) and not early3: d[0] = NEED("b3") + d[0]
        if ks == 27: d[1] = d[1] + MARK("wdend")
        for g in d: qwd.append((0 if ks < 12 else P(24 + 5 * (ks - 12)), 40 + 4 * ks if ks < C["wd_late"] else C["wd_dl"], g))
    fD = 56 + e1 + ack
    ldC, ckC = C["fc"]
    qfl.append((P(C["fc_st"]), 0, WVM("x2_st") + G.flag_store(8, 6, "flagC_st")))
    qfl.append((P(fD), 0, I("v_mov_b32 v8, s56") + wclr + WVM("hh_st0") + G.flag_store(8, 6, "flagD_st")))
    qfl.append((P(ldC), 0, NEED("aC") + VM(ldF, "flagC_ld")))
    ldT = lambda t: "buffer_load_dwordx2 v[20:21], v3, %s, 0 offen offset:%d sc1" % (WS, 8 * t)
    for t in range(1, nfl + 1):
        st, ld, ck = C["ft%d" % t]
        qfl.append((P(st), 0, WVM("hh_st%d" % t) + I("s_mov_b64 exec, 1") + VM("buffer_store_dwordx2 v[6:7], v8, %s, 0 offen offset:%d sc1" % (WS, 8 * t), "flagT%d_st" % t) + I("s_mov_b64 exec, -1")))
        qfl.append((P(ld), 0, NEED("aT") + (NEED("okT1") if t == 2 else []) + VM(ldT(t), "flagT%d_ld" % t)))
    qfl.sort(key=lambda x: x[0])
    qx = [(P(ckC + 6), C["x2a_dl"], NEED("aD") + VM("buffer_load_dwordx4 v[24:27], v18, %s, s45 offen sc1" % WS, "x2") + MARK("x2a")),
          (P(C["gb_at"]), C["gb_at"] - 20, VM("buffer_load_dwordx4 v[12:15], v22, %s, s49 offen sc1" % WS, "x2")),
          (P(C["x2b_at"]), C["x2b_at"] + 60, NEED("aR") + VM("buffer_load_dwordx4 v[28:31], v4, %s, s47 offen sc1" % WS, "x2b"))]
    for q in range(4):
        for s in range(14):
            n = 14 * q + s
            free = P(168) + 16 * (n // 8 + 1) + 1 if g116 else 168 + n + 3
            e = max(P(C["rt0_start"]), free) if q < 3 else max(P(224 + C["q3_at"]), G2 + order.index((s, 3)) + 3)
            if q == 2: e = max(e, P(C["q2_at"]))
            if 1 <= q <= nfl: e = max(e, P(C["ft%d" % q][2]) + 1)
            qhh.append((e, 200 + 2 * n, (NEED("aH") if n == 0 else NEED("okT%d" % q) if (s == 0 and q <= nfl) else []) + hload(q, s)))
    def gap(i):
        k, x = (2, i // 2) if g116 else (1, i)
        if x < 164: return k * (C["gap0"] if (x + 4) % 56 < 14 else C["gap1"] + C["gapt"][x // 56])
        return k * C["gap2"] if i < G2 else 2 * C["gap4"]
    wh = F.requests([qst, qfl, qh2, qmisc, qx, qwd, qhh], gap)
    F.spread("adr", singles(addrC)[:-3] + [addrC[-3:] + MARK("aC")], P(76), P(92))
    F.at("adr", P(ckC), WVM("flagC_ld") + G.spin("fc", [ldF], flagck) + MARK("okC"))
    F.spread("adr", [NEED("clr") + NEED("x2out")] + singles(addrD[1:]) + [MARK("aD")], P(ckC + 1), P(ckC + 3))
    F.spread("adr", singles(addrH) + [MARK("aH")], P(max(166, ckC + 3)), P(max(166, ckC + 3) + 2))
    if nfl:
        F.at("adr", P(170), NEED("wdend") + I("""
        s_lshl_b32 s62, s46, 4
        s_mul_i32 s63, s3, 14
        s_add_u32 s62, s62, s63
        s_lshl_b32 s62, s62, 5
        s_add_u32 s62, s62, %d
        v_min_u32 v3, 13, v1
        v_lshl_add_u32 v3, v3, 5, s62
        """ % FLAGD) + MARK("aT"))
    F.spread("adr", singles(addrR) + [MARK("aR")], P(186), P(196))
    for t in range(1, nfl + 1):
        F.at("adr", P(C["ft%d" % t][2]), WVM("flagT%d_ld" % t) + G.spin("ft%d" % t, [ldT(t)], flagck) + MARK("okT%d" % t))
    for t in range(3):
        F.spread("vf", verify_items(t + 1), P(56 * t + C["vf_at"]), P(56 * t + C["vf_at"] + 4))
    if not early3:
        F.spread("tr", G.wgu_tr(3), 0, P(12))
        F.at("tr", P(14), WDS("wtr3") + I("s_barrier") + MARK("b3"))
        S[P(40)] = WDS("wtr3") + S[P(40)]
    at = P(16)
    for s in range(1 if L["pre_tr"] else 0, 14):
        lat = C["wd_lat"] if s < 8 else min(C["wd_lat"], 30)
        res = 0 if s < 11 else P((217, 224.5, 224.5)[s - 11]) if g116 else 215 + 4 * (s - 11)
        at = max(at, wh.get("wd%d" % (2 * s + 1), -1000) + P(lat), P(166) if s >= 9 else 0, res)
        F.spread("tr", ([NEED("x2out")] if s == 2 else []) + wtr(G, s), at, at + P(4))
        at += P(4)
    for q in range(nfl + 1, 4):
        lo = 0
        for n in C["cgroups"]:
            use = G2 + 56 * q + order.index((lo, 0))
            F.at("vf", use - C["ck16"], (NEED("aR") + NEED("x2a") if (q == nfl + 1 and lo == 0) else []) + hcheck(q, lo, n))
            S[use] = FENCE("vf") + S[use]
            lo += n
        assert lo == 14
    F.at("rw", G2 + 12, NEED("aR") + I("s_barrier"))
    for q in range(4):
        for mt in range(4):
            if q == 3 and mt == 3: break
            pos = G2 + 56 * q + order.index((13, mt)) + 5
            F.at("rw", pos, (NEED("redfree") if (q == 3 and mt == 0) else []) + (nan_net(q) if (mt == 3 and q > nfl) else []) + rwrite(q, mt))
        if q == 1:
            F.at("rw", G2 + 112 + 6, WDS("rw1") + I("s_barrier") + MARK("pair0"))
    rf = red_final(0)
    rf[0] = NEED("pair0") + rf[0]
    rf.append(I("v_add_u32 v5, s63, v5"))
    F.spread("red", rf, G2 + 112 + 8, P(C["rf_end"]))
    for t, nm in enumerate(("g1_0", "_g1_1", "_g1_2", "g1_3")): S[P(56 * t + 56) - 1] += G.stamp(nm)
    S[P(280) - 1] += G.stamp("g2_0")
    for k in range(7, 336, 7): S[P(k) - 1] += G.stamp("_p%d" % k)
    p.add(F.run(["vm", "rw", "vf", "epi", "adr", "tr", "red"], "ffn" if "-w" in sys.argv else None))
    wh = F.where
    if "-w" in sys.argv: print(sorted(wh.items(), key=lambda x: x[1]))
    for t in range(3): assert wh["hh_st%d" % t] < P(56 * (t + 2) - 2)
    assert wh["hh_st3"] < G2 + 106 and wh["aR"] < P(222)
    p.add(nan_net(3))
    p.add(G.stamp("g2_1"))
    p.add(rwrite(3, 3))
    p("s_waitcnt lgkmcnt(0)\ns_barrier")
    p.add(G.stamp("_rbar"))
    p.add(flat(red_final(1)))
    p.add(G.stamp("_ost"))
```

```python
import hz

class Prog:
    def __init__(self):
        self.items = []
        self.tail = []
        self.nstamp = 0
        self.stamp_names = []
    def __call__(self, s):
        for l in s.split("\n"):
            l = l.strip()
            if l:
                self.items.append(("i", l, None))
    def vm(self, s, tag=None): self.items.append(("vm", s, tag))
    def ds(self, s, tag=None): self.items.append(("ds", s, tag))
    def wvm(self, tag): self.items.append(("wvm", None, tag))
    def wds(self, tag): self.items.append(("wds", None, tag))
    def add(self, items): self.items.extend(items)
    def out(self, s):
        for l in s.split("\n"):
            l = l.strip()
            if l:
                self.tail.append(l)
    def resolve(self):
        lines = []
        seq = {"vm": [], "ds": []}
        done = {"vm": 0, "ds": 0}
        import re
        drop = getattr(self, "drop", None)
        for kind, text, tag in self.items:
            if drop and tag and re.fullmatch(drop, tag):
                continue
            if kind in ("vm", "ds"):
                seq[kind].append(tag); lines.append(text)
            elif kind in ("wvm", "wds"):
                k = kind[1:]
                idx = max(i for i, t in enumerate(seq[k]) if t == tag)
                if idx < done[k]:
                    continue
                n = len(seq[k]) - 1 - idx
                lim = 63 if k == "vm" else 15
                n = min(n, lim)
                done[k] = len(seq[k]) - n
                lines.append("s_waitcnt %s(%d)" % ("vmcnt" if k == "vm" else "lgkmcnt", n))
            else:
                lines.append(text)
                if text.startswith("s_waitcnt") and "; cond" not in text:
                    if "vmcnt(0)" in text: done["vm"] = len(seq["vm"])
                    if "lgkmcnt(0)" in text: done["ds"] = len(seq["ds"])
        return lines

def fmt(lines):
    return [l if (l.endswith(":") or l.startswith(".")) else "    " + l for l in lines]

def weave(main, fill, start=0, end=None):
    end = len(main) if end is None else end
    n = end - start
    out, k = [], 0
    for i, m in enumerate(main):
        out.append(list(m))
        if start <= i < end:
            upto = (len(fill) * (i - start + 1) + n - 1) // n if i < end - 1 else len(fill)
            while k < upto:
                out[-1].extend(fill[k]); k += 1
    return out

def flat(groups):
    return [x for g in groups for x in g]
def I(s, tag=None): return [("i", l.strip(), tag) for l in s.split("\n") if l.strip()]
def VM(s, tag=None): return [("vm", s, tag)]
def DS(s, tag=None): return [("ds", s, tag)]
def WVM(tag): return [("wvm", None, tag)]
def WDS(tag): return [("wds", None, tag)]

def singles(items):
    out, glue = [], False
    for x in items:
        if glue: out[-1].append(x)
        else: out.append([x])
        glue = x[0] == "i" and x[1].startswith("s_cmp")
    return out

def slots(S, queues, gap, start=0):
    heads = [0] * len(queues)
    pos, where, stick = float(start), {}, None
    while any(h < len(q) for h, q in zip(heads, queues)):
        i = int(pos)
        assert i < len(S), "requests left over"
        ready = [k for k, q in enumerate(queues) if heads[k] < len(q) and q[heads[k]][0] <= i]
        if not ready:
            pos = i + 1.0
            continue
        k = min(ready, key=lambda k: queues[k][heads[k]][1])
        if stick is not None: k = stick
        e, d, g = queues[k][heads[k]]
        nxt = queues[k][heads[k] + 1][2] if heads[k] + 1 < len(queues[k]) else None
        stick = k if (nxt and nxt[0][0] == "vm" and nxt[0][1].endswith(" lds")) else None
        S[i] = S[i] + g
        for x in g:
            if x[0] == "vm": where[x[2]] = i
        heads[k] += 1
        pos += gap(i) if callable(gap) else gap
    return where

import re as _re
_E32 = ("v_mul_f32", "v_add_f32", "v_add_u32", "v_mov_b32", "v_lshlrev_b32", "v_lshrrev_b32", "v_or_b32", "v_and_b32", "v_max_u32",
        "v_min_u32", "v_cmp_", "v_fmac_f32", "v_xor_b32", "v_mul_u32_u24", "v_cndmask_b32", "v_sub_u32", "v_subrev_u32")
def cost(x):
    kind, text, tag = x
    if kind in ("wvm", "wds"): return 4.0
    if kind in ("fence", "mark", "need") or text.endswith(":"): return 0.0
    if text.startswith("buffer_store"): return 24.0 if "x4" in text else 16.0
    if text.startswith("buffer_"): return 8.0
    if text.startswith("ds_write"): return 20.0
    if text.startswith("ds_"): return 4.0
    assert not text.startswith("v_pk_"), "packed op beside MFMAs: " + text
    lit = [int(m, 0) for m in _re.findall(r"(?<![\w\[:])(-?0x[0-9a-f]+|-?\d+)(?![\w\]:.])", text.split(None, 1)[1] if " " in text else "")]
    big = any(n > 64 or n < -16 for n in lit)
    if text.startswith("s_"): return 4.8 if (big or text.startswith("s_mem")) else 4.0
    return 4.0 if (text.startswith(_E32) and not big) else 4.8

def isnarrow(x): return x[0] == "i" and x[1].startswith("s_mov_b64 exec,") and not x[1].endswith("-1")
def MARK(name): return [("mark", "", name)]
def NEED(name): return [("need", "", name)]
def FENCE(*streams): return [("fence", "", streams)]

class Sched:
    def __init__(self, main, budget, dslat, before=()):
        self.main, self.budget, self.dslat = main, budget, dslat
        self.streams = {}
        self.where = {}
    def at(self, stream, pos, items):
        q = self.streams.setdefault(stream, [])
        if q: pos = max(pos, q[-1][0])
        q.extend((pos, x) for x in items)
    def spread(self, stream, groups, start, end):
        n = len(groups)
        for k, g in enumerate(groups):
            self.at(stream, start + (k * (end - start)) // max(n, 1), g)
    def requests(self, queues, gap, start=0):
        tmp = [[] for _ in self.main]
        wh = slots(tmp, queues, gap, start)
        for i, g in enumerate(tmp):
            k = min([j for j, x in enumerate(g) if x[0] == "vm" or isnarrow(x)] + [len(g)])
            self.at("vm", max(i - getattr(self, "lead", lambda i: 1)(i), 0), g[:k])
            self.at("vm", i, g[k:])
        return wh
    def run(self, order, name=None):
        total, seen, last, marks = {}, {}, {}, set()
        allitems = [x for q in self.streams.values() for _, x in q] + [x for g in self.main for x in g]
        for x in allitems:
            if x[0] in ("vm", "ds") and x[2]: total[(x[0], x[2])] = total.get((x[0], x[2]), 0) + 1
        assert set(order) == set(self.streams), (order, list(self.streams))
        cnt, idx, done = {"vm": 0, "ds": 0}, {}, {"vm": -1, "ds": -1}
        base_cost = globals()["cost"]
        def cost(x):
            if x[0] in ("wvm", "wds") and idx.get((x[0][1:], x[2]), 0) <= done[x[0][1:]]: return 0.0
            return base_cost(x)
        def note(x, i):
            if x[0] in ("vm", "ds"):
                cnt[x[0]] += 1; idx[(x[0], x[2])] = cnt[x[0]]
            if x[0] in ("wvm", "wds"):
                done[x[0][1:]] = max(done[x[0][1:]], idx.get((x[0][1:], x[2]), 0))
            if x[0] in ("vm", "ds") and x[2]:
                seen[(x[0], x[2])] = seen.get((x[0], x[2]), 0) + 1; last[(x[0], x[2])] = i
                self.where[x[2]] = i
            if x[0] == "mark": marks.add(x[2]); self.where[x[2]] = i
        def ready(x, i, force=False):
            if x[0] == "need": return x[2] in marks
            if x[0] in ("wvm", "wds"):
                k = (x[0][1:], x[2])
                if seen.get(k, 0) < total.get(k, 0): return False
                if x[0] == "wds" and k in last and not force: return i - last[k] >= (self.dslat(i) if callable(self.dslat) else self.dslat)
            return True
        def heavy(q):
            x = q[0][1]
            return x[0] == "vm" or isnarrow(x) or (x[0] == "ds" and x[1].startswith("ds_write"))
        def take(q, dst, i):
            c = 0.0
            while True:
                x = q.pop(0)[1]
                c += cost(x); dst.append(x); note(x, i)
                glue = (x[0] == "i" and (isnarrow(x) or x[1].startswith(("s_cmp", "v_cmp", "s_cbranch")))) or \
                       (q and (q[0][1][1] == "s_mov_b64 exec, -1" or q[0][1][0] == "mark"))
                if not (glue and q): return c
        def flush(names, dst, i):
            c = 0.0
            progress = True
            while progress and any(self.streams[n] and self.streams[n][0][0] <= i for n in names):
                progress = False
                for n in order:
                    q = self.streams[n]
                    blocked = [m for m in names if self.streams[m] and self.streams[m][0][0] <= i and not ready(self.streams[m][0][1], i, True)]
                    while q and q[0][0] <= i and (n in names or blocked) and ready(q[0][1], i, True):
                        c += take(q, dst, i); progress = True
                        if n not in names: break
            assert not any(self.streams[n] and self.streams[n][0][0] <= i for n in names), "cannot flush %s at %d" % (names, i)
            return c
        out, over, defer = [], 0.0, 0
        ismf = lambda x: x[0] == "i" and x[1].startswith("v_mfma")
        for i, g in enumerate(self.main):
            m = [k for k, x in enumerate(g) if ismf(x)][0]
            for x in g[:m]:
                if x[0] == "fence": over += flush(x[2], out[-1], i - 1)
                elif x[0] in ("wvm", "wds", "need"):
                    assert ready(x, i, True), "main stream waits for %s at %d" % (x[2], i)
                    note(x, i)
            head, pin = g[:m + 1], g[m + 1:]
            nxt = self.main[i + 1] if i + 1 < len(self.main) else []
            mn = ([k for k, x in enumerate(nxt) if ismf(x)] + [0])[0]
            left = (self.budget(i) if callable(self.budget) else self.budget) - sum(cost(x) for x in pin) - sum(cost(x) for x in nxt[:mn])
            first, after = [], []
            for n in order:
                q = self.streams[n]
                if q and q[0][0] <= i and heavy(q) and not first:
                    c = cost(q[0][1]) if q[0][1][0] != "i" else 24.0
                    if c <= left + 0.01 or defer >= 1:
                        left -= take(q, first, i); defer = 0
                    else:
                        defer += 1
                    break
            pin2 = []
            for x in pin:
                if x[0] == "fence": left -= flush(x[2], pin2, i)
                else: pin2.append(x); note(x, i)
            progress = True
            while progress:
                progress = False
                for n in order:
                    q = self.streams[n]
                    while q and q[0][0] <= i and not heavy(q) and ready(q[0][1], i) and cost(q[0][1]) <= left + 0.01:
                        left -= take(q, after, i); progress = True
            if left < 0: over -= left
            out.append(head + first + pin2 + after)
        nleft = sum(len(q) for q in self.streams.values())
        over += flush(list(order), out[-1], 10 ** 6)
        if name: print("sched %s: %d gaps, overflow %.0f clocks, %d left at end" % (name, len(self.main), over, nleft))
        return [x for x in flat(out) if x[0] not in ("fence", "mark", "need")]
```

```python
import sys
import hz
from prog import *
from asmlib import NAME, HEAD, entry, kd

EPOCH, FLAGA, FLAGB, MOD, MODB, FLAGC, FLAGD, FLAGH = 0, 0x40000, 0x60000, 0xC000, 0x10000, 0x18000, 0x20000, 0x12000
KVT, YY, H2, X2, HH, WS_SIZE = 0x200000, 0x200000, 0x600000, 0x800000, 0xA00000, 0x1200000
STAMP_OFF = 32 << 20
KVR = 4608
STG, HALF, R0 = 0, 57344, 114688
RA, RB = 12288, 14336
KL, KP = R0, 4224
KVL, KVP = R0 + 16896, 1040
U0, UCH = R0 + 28672, 12288
EX = R0
def exoff(T): return 4096 * T if T < 7 else 36864
BSO, MODO, BSP = 7168, 9216, 928
PAIRS = (0, 1, 2, 0, 3, 4, 5, 1, 2, 0, 3, 4, 5, 1)
TILE = 28672
RED, REDW, REDP = 0, 8704, 272
LDS_BYTES = 163840
OOB = 0x80000000
SPIN = 1 << 16
WS, SK, SV, SSH, SSK, SQ, SG, SU, SD, SO, SC = ("s[%d:%d]" % (b, b + 3) for b in (4, 8, 12, 16, 20, 24, 28, 32, 36, 40, 44))
ACC = (48, 80)
HF = 32

def v(b, n=1): return "v%d" % b if n == 1 else "v[%d:%d]" % (b, b + n - 1)
def ar(b, n=1): return "a%d" % b if n == 1 else "a[%d:%d]" % (b, b + n - 1)
def txt(items): return "\n".join(x[1] for x in items)
def wd_reg(ks, t):
    if ks < 4: return "a", 224 + 8 * ks + 4 * t
    return "v", 112 + 8 * (ks - 4) + 4 * t
def rr(kind, b, n): return (v if kind == "v" else ar)(b, n)

CFG = dict(nq0=8, g116=1, wd_w5=2, recyc=0, t2=0, late2=1, nfl=1, e2=24, ft1=(164, 188, 211), ft2=(208, 230, 246), chains=(2, 2, 2, 2, 2, 4), cgroups=(4, 4, 2, 4), q2_at=214, gap4=2.0, res_at=215, x2a_dl=170, g16=1, q3_at=36, ck16=7, cls1=0, l2n=(4, 7), skew=8, rf_end=320, hm=4, q_b=6, q_p1=0, w3f=0.8, w5f=0.6, latemod=1, fsh=5, inl='fb', w2='al-k', hpace=0, x2_at=40, gapt=(0, 0, 0), rot2=0, h2first=1, fc_st=80, wd_late=28, wd_dl=205, gb_at=260, x2b_at=290, gap0=2.0,
           g1map=1, g2map=1, tm_rows=2, q_w5=0, q_w6=6, gate2=0, sl_h=8, warm_at=2, warm=(0,), hclr=8, rbar=282, e3=8, clr_at=(40, 4), fc=(134, 160), rt0_start=171, gate3=0, gap3=1.0, burst=10, ck0=8, ck1=3, bubble=0,
           rot=1, cpf=1, kgate=1, tm=0, tga=0, tgb=0, x_at=1, mpf='me', outflag='sc1', bud16=9.6, bud32=24.0, sl=0, sl_fb=0, sl_yy=4,
           fa_early=0, fa_at=100, q_w1=0, q_w2=6, q_w3=10, bv=70, bw=110, bx=144, by=140, q_conv=0, cgap=7, fb_at=116,
           q_w4=16, wd_pre=0, wd_post=4, gap1=2.5, gap2=2.1, wd_lat=50, vf_at=38,
           epi=(3, 18), ack=28, flat=16, rt1_start=38, use_e=0)

class Gen:
    def __init__(self, stamps=False, probe=None):
        self.p = Prog()
        self.probe, self.stamps = probe, stamps
        self.cfg = dict(CFG)
        self.names = []

    def stamp(self, name):
        if self.probe:
            if name == "start": return I("s_memrealtime s[100:101]")
            return I("s_memrealtime s[98:99]") if name == self.probe else []
        if not self.stamps: return []
        sel = self.cfg.get("st")
        if sel and name != "start" and name not in sel: return []
        if not sel and name.startswith("_"): return []
        if name not in self.names: self.names.append(name)
        i = self.names.index(name)
        b = 100 if i == 0 else 68 + 2 * (i - 1)
        assert i == 0 or b < 100
        return I("%s s[%d:%d]" % ("s_memtime" if self.cfg.get("cyc") else "s_memrealtime", b, b + 1))

    def unpack(self, dst, src):
        return I("v_lshlrev_b32 %s, 16, %s\nv_and_b32 %s, 0xffff0000, %s" % (v(dst), v(src), v(dst + 1), v(src)))

    def smax(self, dst, regs):
        regs = list(regs)
        out = ["v_max3_u32 %s, %s, %s, %s" % (v(dst), v(regs[0]), v(regs[1]), v(regs[2]))]
        regs = regs[3:]
        while len(regs) >= 2:
            out.append("v_max3_u32 %s, %s, %s, %s" % (v(dst), v(dst), v(regs[0]), v(regs[1]))); regs = regs[2:]
        if regs: out.append("v_max_u32 %s, %s, %s" % (v(dst), v(dst), v(regs[0])))
        return out + ["v_cmp_eq_u32 vcc, -1, %s" % v(dst)]

    def phase(self, dst, regs, want):
        r = list(regs)
        op3 = "v_bitop3_b32 %s, %s, %s, %s bitop3:0x80" if want else "v_or3_b32 %s, %s, %s, %s"
        out = [op3 % (v(dst), v(r[0]), v(r[1]), v(r[2])), op3 % (v(dst), v(dst), v(r[3]), v(r[4])), op3 % (v(dst), v(dst), v(r[5]), v(r[6]))]
        if want: return out + [op3 % (v(dst), v(dst), v(r[7]), "1"), "v_cmp_eq_u32 vcc, 0, %s" % v(dst)]
        return out + ["v_bitop3_b32 %s, %s, %s, 1 bitop3:0xa8" % (v(dst), v(dst), v(r[7])), "v_cmp_ne_u32 vcc, 0, %s" % v(dst)]

    def spin(self, name, reload_lines, check_lines, inline=None):
        if name in self.cfg["inl"].split("-"):
            sl = self.cfg.get("sl_" + name, self.cfg["sl"])
            body = ["s_cbranch_vccz L_%s_ok" % name, "s_mov_b32 s67, 0", "L_%s_loop:" % name] + (["s_sleep %d" % sl] if sl else [])
            body += [l + " ; conditional path" if l.startswith("s_waitcnt") else l for l in list(reload_lines) + ["s_waitcnt vmcnt(0) lgkmcnt(0)"] + list(check_lines)]
            body += ["s_cbranch_vccz L_%s_ok" % name, "s_add_u32 s67, s67, 1", "s_cmp_lt_u32 s67, %d" % SPIN, "s_cbranch_scc1 L_%s_loop" % name, "L_%s_ok:" % name]
            return I("\n".join(list(check_lines if inline is None else inline) + body))
        o = self.p.out
        o("L_%s_retry:\ns_mov_b32 s67, 0\nL_%s_loop:" % (name, name))
        sl = self.cfg.get("sl_" + name, self.cfg["sl"])
        if sl: o("s_sleep %d" % sl)
        o("\n".join(reload_lines))
        o("s_waitcnt vmcnt(0) lgkmcnt(0)")
        o("\n".join(check_lines))
        o("s_cbranch_vccz L_%s_ok\ns_add_u32 s67, s67, 1\ns_cmp_lt_u32 s67, %d\ns_cbranch_scc1 L_%s_loop\ns_branch L_%s_ok" % (name, SPIN, name, name))
        return I("\n".join(check_lines if inline is None else inline) + "\ns_cbranch_vccnz L_%s_retry\nL_%s_ok:" % (name, name))

    def flag_store(self, addr, data, tag):
        return I("s_mov_b64 exec, 1") + VM("buffer_store_dwordx2 %s, v%d, %s, 0 offen sc1" % (v(data, 2), addr, WS), tag) + I("s_mov_b64 exec, -1")

    def line_flag(self, tag):
        n = {5: 1, 6: 0xf, 7: 0xff}[self.cfg["fsh"]]
        if n == 1: return self.flag_store(14, 124, tag)
        return I("s_mov_b64 exec, %d" % n) + VM("buffer_store_dwordx4 v[124:127], v14, %s, 0 offen sc1" % WS, tag) + I("s_mov_b64 exec, -1")

    def srd(self, b, size): return "s_mov_b32 s%d, %s\ns_mov_b32 s%d, s7" % (b + 2, size, b + 3)

    def prologue(self):
        p = self.p
        p.add(self.stamp("start"))
        p("""
        s_lshr_b32 s53, s2, 3
        s_cmp_ge_u32 s53, 32
        s_cbranch_scc1 L_end
        s_load_dwordx16 s[56:71], s[0:1], 0
        s_load_dwordx2 s[4:5], s[0:1], 112
        s_load_dwordx8 s[72:79], s[0:1], 64
        s_load_dwordx2 s[40:41], s[0:1], 96
        s_mov_b32 s7, 0x20000
        """)
        if self.cfg["cpf"] == 1:
            p("""
            s_getpc_b64 s[44:45]
            L_pc:
            %s
            s_mov_b32 s46, 0x8000
            s_mov_b32 s47, s7
            v_lshrrev_b32 v2, 5, v0
            v_lshlrev_b32 v2, 12, v2
            s_lshl_b32 s52, s53, 7
            s_mov_b32 exec_lo, 1
            s_mov_b32 exec_hi, 1
            """ % ("s_add_u32 s44, s44, L_page-L_pc\ns_addc_u32 s45, s45, 0" if self.cfg["warm"] else ""))
            p.vm("buffer_load_dword v3, v2, %s, s52 offen" % SC, "code")
            p("s_mov_b64 exec, -1")
        p("""
        v_lshrrev_b32 v2, 6, v0
        v_and_b32 v1, 63, v0
        s_and_b32 s52, s2, 7
        v_readfirstlane_b32 s3, v2
        s_mul_i32 s54, s53, 37
        s_lshr_b32 s54, s54, 8
        s_mul_i32 s55, s54, 7
        s_sub_u32 s55, s53, s55
        s_cmp_lt_u32 s53, 28
        s_cbranch_scc1 L_worker
        v_lshlrev_b32 v4, 2, v0
        v_lshrrev_b32 v14, 4, v0
        v_and_b32 v15, 15, v0
        v_mul_u32_u24 v8, 336, v14
        v_add_lshl_u32 v8, v8, v15, 4
        s_sub_u32 s48, s2, 224
        s_lshl_b32 s49, s48, 8
        s_mov_b32 s44, s49
        s_movk_i32 s18, 896
        s_mov_b32 s19, s7
        %s
        s_mov_b32 s46, %d
        s_waitcnt lgkmcnt(0) ; conditional path
        s_mov_b64 s[16:17], s[76:77]
        s_mov_b64 s[20:21], s[78:79]
        s_load_dwordx2 s[50:51], s[4:5], %d
        s_cmp_ge_u32 s48, 21
        s_cbranch_scc1 L_h_free
        buffer_load_dword v5, v4, %s, 0 offen
        """ % (self.srd(20, 2408448), 16 * 5376, EPOCH, SSH))
        for i in range(10):
            p("buffer_load_dwordx4 %s, v8, %s, s44 offen\ns_add_u32 s44, s44, s46" % (v(128 + 4 * i, 4), SSK))
        p("s_branch L_helper\nL_worker:")

    def common_setup(self):
        s = "v_lshlrev_b32 v11, 4, v1\n"
        s += "s_mov_b64 s[24:25], s[56:57]\ns_mov_b64 s[28:29], s[70:71]\ns_mov_b64 s[32:33], s[72:73]\ns_mov_b64 s[36:37], s[74:75]\n"
        for b, sz in ((24, 1835008), (28, 1605632), (32, "s30"), (36, "s30"), (40, "s26")):
            s += self.srd(b, sz) + "\n"
        s += """
        s_and_b32 s57, s53, 7
        s_lshl_b32 s57, s57, 5
        s_and_b32 s58, s53, 24
        s_add_u32 s57, s57, s58
        s_lshl_b32 s58, s52, 8
        s_add_u32 s57, s57, s58
        s_lshr_b32 s58, s3, 1
        s_add_u32 s57, s57, s58
        s_and_b32 s58, s3, 1
        s_lshl_b32 s58, s58, 2
        s_add_u32 s57, s57, s58
        v_lshrrev_b32 v2, 5, v1
        v_lshl_add_u32 v2, v2, 1, s57
        v_and_b32 v24, 31, v1
        v_bfe_u32 v25, v2, 1, 3
        v_mul_u32_u24 v2, 896, v2
        v_xor_b32 v25, v25, v24
        v_lshl_add_u32 v26, v24, 4, v2
        v_lshl_add_u32 v28, v25, 4, v2
        v_cmp_gt_u32 vcc, 24, v24
        v_mov_b32 v25, 0x%x
        v_add_u32 v27, 512, v26
        v_add_u32 v29, 512, v28
        v_cndmask_b32 v27, v25, v27, vcc
        v_cndmask_b32 v29, v25, v29, vcc
        """ % OOB
        return s

    def x_loads(self):
        return [VM("buffer_load_dwordx4 v[112:115], v26, %s, 0 offen" % SQ, "x"),
                VM("buffer_load_dwordx4 v[116:119], v27, %s, 0 offen" % SQ, "x")]

    def h2_clears(self, tag):
        return [I("s_mov_b32 s66, %d" % H2) + VM("buffer_store_dwordx4 v[120:123], v28, %s, s66 offen sc1" % WS, tag),
                VM("buffer_store_dwordx4 v[120:123], v29, %s, s66 offen sc1" % WS, tag)]

    def nq(self, q): return (self.cfg["nq0"], 14 - self.cfg["nq0"])[q & 1] if self.cfg["g116"] else 7

    def wgu_dma(self, q):
        g = []
        k0 = self.nq(0) * (q & 1)
        for ks in range(k0, k0 + self.nq(q)):
            g.append(I("s_add_u32 m0, s60, %d\ns_add_u32 s59, s%d, %d" % (ks * 8192, q >> 1, ks * 57344), "wq%d" % q)
                     + VM("buffer_load_dwordx4 v20, %s, s59 offen lds" % SG, "wq%d" % q))
            g.append(VM("buffer_load_dwordx4 v20, %s, s59 offen offset:1024 lds" % SU, "wq%d" % q))
        return g

    def wgu_tr(self, q):
        g = []
        if self.cfg["g116"]:
            s0 = 7 * (q >> 1) + self.nq(0) // 2 * (q & 1)
            for sl in range(self.nq(q) // 2):
                for X in range(2):
                    for mt in range(2):
                        for i in range(2):
                            g.append(DS("ds_read_b64_tr_b16 %s, %s offset:%d" % (
                                ar(16 * (s0 + sl) + 8 * X + 4 * mt + 2 * i, 2), v(21 + mt), sl * 16384 + i * 2048 + X * 1024), "wtr%d" % q))
            if q: g[0] = I("v_xor_b32 v21, %d, v21\nv_xor_b32 v22, %d, v22" % (8192 * self.nq(0), 8192 * self.nq(0))) + g[0]
            return g
        for ks in range(7):
            for X in range(2):
                for i in range(2):
                    g.append(DS("ds_read_b64_tr_b16 %s, %s offset:%d" % (
                        ar(8 * (7 * q + ks) + 4 * X + 2 * i, 2), v(21 + (q & 1)), ks * 8192 + i * 2048 + X * 1024), "wtr%d" % q))
        return g

    def warmup(self):
        if not self.cfg["warm"]: return
        f = 2 if self.cfg["warm_at"] in (2, 4) else 1
        self.p("s_mov_b64 exec, 0")
        for w in range(3): self.p("s_cmp_eq_u32 s3, %d\ns_cbranch_scc1 L_pg%d" % (w, w + f))
        self.p("s_branch L_pg%d\nL_warm:\ns_mov_b64 exec, -1" % (3 + f))

    def touch_mod(self):
        n = self.cfg["tm_rows"]
        return I("""
        s_mov_b64 s[16:17], s[78:79]
        s_mov_b32 s18, 2408448
        s_lshl_b32 s45, s53, 2
        s_add_u32 s45, s45, s3
        s_mul_i32 s45, s45, %d
        s_lshl_b32 s47, s52, 8
        s_add_u32 s45, s45, s47
        s_add_u32 s45, s45, %d
        s_cmp_lt_u32 s52, 5
        s_cselect_b32 s47, 2, 1
        v_lshrrev_b32 v63, 3, v1
        v_mul_u32_u24 v63, 42, v63
        v_bfe_u32 v62, v1, 1, 2
        v_min_u32 v62, s47, v62
        v_lshl_add_u32 v63, v62, 4, v63
        v_and_b32 v62, 1, v1
        v_add_lshl_u32 v63, v63, v62, 7
        s_mov_b32 exec_hi, 0
        s_mov_b32 exec_lo, 0x%x
        """ % (n * 5376, (448 - 112 * n) * 5376, (1 << (8 * n)) - 1)) + VM("buffer_load_dword v102, v63, %s, s45 offen" % SSH, "touch") + I("s_mov_b64 exec, -1")

    def touch_gu(self, half):
        g = []
        if half == min(h for h in range(2) if self.cfg[("tga", "tgb")[h]]):
            g += I("""
            s_and_b32 s57, s3, 1
            s_cmp_eq_u32 s57, 0
            s_cselect_b32 s8, s28, s32
            s_cselect_b32 s9, s29, s33
            s_mov_b32 s10, %d
            s_lshl_b32 s45, s57, 10
            s_lshl_b32 s57, s53, 1
            s_lshr_b32 s47, s3, 1
            s_add_u32 s57, s57, s47
            s_lshl_b32 s57, s57, 2
            s_lshr_b32 s47, s52, 1
            s_add_u32 s57, s57, s47
            s_mul_i32 s57, s57, 3584
            s_add_u32 s45, s45, s57
            s_and_b32 s57, s52, 1
            s_mul_i32 s57, s57, 1792
            s_add_u32 s45, s45, s57
            """ % (1605632 + 1024))
        return g + I("s_add_u32 s46, s45, %d\nv_lshlrev_b32 v63, 7, v1\ns_mov_b64 exec, 0x3fff" % (half * 224 * 3584)) + \
            VM("buffer_load_dword v103, v63, %s, s46 offen" % SK, "touch") + I("s_mov_b64 exec, -1")

    def extras(self, at):
        g = []
        if self.cfg["tm"] == at: g += self.touch_mod()
        if self.cfg["tga"] == at: g += self.touch_gu(0)
        if self.cfg["x_at"] == at: g += flat(self.x_loads())
        if self.cfg["tgb"] == at: g += self.touch_gu(1)
        return g

    def wd_addr(self):
        return I(("""
        v_lshrrev_b32 v10, 5, v1
        v_bfe_u32 v9, v1, 2, 3
        v_mul_u32_u24 v3, 896, v9
        v_lshl_add_u32 v3, v10, 6, v3
        v_and_b32 v9, 3, v1
        v_lshl_add_u32 v3, v9, 4, v3
        s_mul_i32 s58, s3, %d
        s_lshl_b32 s47, s14, 7
        s_add_u32 s58, s58, s47
        s_cmp_ge_u32 s53, 28
        s_cselect_b32 s58, 0x80000000, s58
        v_add_u32 v3, s58, v3
        s_mul_i32 s64, s3, %d
        s_add_u32 s64, s64, %d
        s_mul_i32 s16, s3, %d
        s_add_u32 s16, s16, %d
        G16BASE
        s_sub_u32 s58, s16, s64
        v_add_u32 v0, s58, v23
        s_lshr_b32 s10, s15, %d
        s_add_u32 s10, s10, s14
        s_and_b32 s10, s10, %d
        s_mul_i32 s8, s10, 200704
        s_sub_u32 s9, 200704, s8
        """ % (448 * 896, RA, R0, RB, HALF, 2 if self.cfg["rot2"] == 1 else 10, min(1, self.cfg["rot2"]))).replace("G16BASE", """
        v_bfe_u32 v23, v1, 2, 3
        v_lshlrev_b32 v23, 6, v23
        v_lshl_add_u32 v23, v9, 3, v23
        v_lshl_add_u32 v23, v10, %d, v23
        v_add_u32 v23, s64, v23""" % (10 if self.cfg["g116"] else 11) if self.cfg["g16"] else ""))

    def pairs(self): return PAIRS if self.cfg["recyc"] else [s % 6 for s in range(14)]

    def wd_dma(self, ks, short=False):
        sl = 2 * self.pairs()[ks // 2] + ks % 2 if self.cfg["g16"] else ks % 13
        base, off = ("s64", sl * 2048) if sl < 6 else ("s16", (sl - 6) * 2048)
        if short:
            return [I("s_add_u32 m0, %s, %d\ns_add_u32 s58, s%d, %d" % (base, off, 8 + ks // 14, (ks % 14) * 16 * 896), "wd%d" % ks)
                    + VM("buffer_load_dwordx4 v3, %s, s58 offen lds" % SD, "wd%d" % ks),
                    VM("buffer_load_dwordx4 v28, %s, s58 offen offset:1024 lds" % SD, "wd%d" % ks)]
        return [I("s_add_u32 m0, %s, %d\ns_add_u32 s58, s%d, %d" % (base, off + 1024 * i, 8 + ks // 14, (ks % 14) * 16 * 896 + 8 * 896 * i), "wd%d" % ks)
                + VM("buffer_load_dwordx4 v3, %s, s58 offen lds" % SD, "wd%d" % ks) for i in range(2)]

    def ln_stats(self, x, S, Q):
        g = I("v_pk_add_f32 %s, %s, %s" % (v(S, 2), v(x, 2), v(x + 2, 2)))
        g += I("v_pk_mul_f32 %s, %s, %s" % (v(Q, 2), v(x, 2), v(x, 2)))
        g += I("v_pk_fma_f32 %s, %s, %s, %s" % (v(Q, 2), v(x + 2, 2), v(x + 2, 2), v(Q, 2)))
        for i in range(2, 8):
            g += I("v_pk_add_f32 %s, %s, %s" % (v(S, 2), v(S, 2), v(x + 2 * i, 2)))
            g += I("v_pk_fma_f32 %s, %s, %s, %s" % (v(Q, 2), v(x + 2 * i, 2), v(x + 2 * i, 2), v(Q, 2)))
        g += I("""
        v_add_f32 {S}, {S}, {S1}
        v_add_f32 {Q}, {Q}, {Q1}
        v_permlane16_swap_b32 {S}, {Q}
        v_add_f32 {S}, {S}, {Q}
        v_add_f32_dpp {S}, {S}, {S} quad_perm:[1,0,3,2]{d}
        v_add_f32_dpp {S}, {S}, {S} quad_perm:[2,3,0,1]{d}
        v_add_f32_dpp {S}, {S}, {S} row_half_mirror{d}
        v_add_f32_dpp {S}, {S}, {S} row_mirror{d}
        v_mul_f32 {S1}, 0x3b124925, {S}
        v_mul_f32 {Q}, 0x3b124925, {S}
        v_permlane16_swap_b32 {S1}, {Q}
        v_fma_f32 {Q}, -{S1}, {S1}, {Q}
        v_max_f32 {Q}, 0, {Q}
        v_add_f32 {Q}, 0x3727c5ac, {Q}
        v_rsq_f32 {S}, {Q}
        v_mul_f32_e64 {S1}, -{S1}, {S}
        """.format(S=v(S), S1=v(S + 1), Q=v(Q), Q1=v(Q + 1), d=" row_mask:0xf bank_mask:0xf"))
        return g

    def ln1(self):
        g = []
        for i in range(8): g += self.unpack(64 + 2 * i, 112 + i)
        return g + self.ln_stats(64, 6, 80)

    def p1(self):
        p, C = self.p, self.cfg
        p("""
        s_lshl_b32 s48, s52, 2
        s_add_u32 s48, s48, s54
        v_lshrrev_b32 v4, 3, v1
        v_and_b32 v5, 7, v1
        v_mul_u32_u24 v6, 56, v4
        v_add_lshl_u32 v6, v6, v5, 4
        s_mul_i32 s49, s48, %d
        s_lshl_b32 s46, s55, 7
        s_add_u32 s49, s49, s46
        s_movk_i32 s44, 7168
        s_sub_u32 s45, s49, s44
        s_cselect_b32 s45, 0x80000000, s45
        s_mul_i32 s46, s3, s44
        s_lshl1_add_u32 s49, s46, s49
        s_add_u32 s44, s44, s49
        s_mul_i32 s46, s3, %d
        s_mov_b32 m0, %d
        %s
        %s
        s_waitcnt lgkmcnt(0)
        """ % (64 * 896, 2 * KVP, KVL, self.srd(8, 1835008), self.srd(12, "s10")))
        p.add(self.stamp("_karg"))
        p("""
        s_mov_b64 s[8:9], s[58:59]
        s_mov_b64 s[12:13], s[60:61]
        s_cmp_lg_u32 s3, 0
        s_cbranch_scc1 L_nohalo
        buffer_load_dwordx4 v6, %s, s45 offen lds
        L_nohalo:
        s_add_u32 m0, s46, %d
        s_movk_i32 s45, %d
        """ % (SK, KVL + KVP, KVP))
        p.vm("buffer_load_dwordx4 v6, %s, s49 offen lds" % SK, "kv1")
        p("s_add_u32 m0, m0, s45\ns_lshl_b32 s46, s3, 3")
        p.vm("buffer_load_dwordx4 v6, %s, s44 offen lds" % SK, "kv2")
        p("s_add_u32 m0, m0, %d\ns_mov_b64 s[16:17], s[62:63]" % (7 * KVP))
        p.vm("buffer_load_dwordx4 v6, %s, s49 offen lds" % SV, "kv3")
        p("s_add_u32 m0, m0, s45\ns_movk_i32 s18, 3584")
        p.vm("buffer_load_dwordx4 v6, %s, s44 offen lds" % SV, "kv")
        p("""
        s_load_dwordx2 s[50:51], s[4:5], %d
        s_mul_i32 s47, s52, 28
        s_add_u32 s47, s47, s53
        s_lshl_b32 s49, s47, 2
        s_load_dword s66, s[66:67], s49
        s_mov_b32 s19, s7
        v_add_lshl_u32 v8, v4, s46, 4
        s_lshl_b32 s49, s55, 9
        """ % EPOCH)
        p.vm("buffer_load_dwordx4 v[52:55], v8, %s, s49 offen" % SSH, "kv")
        p("""
        s_lshl_b32 s49, s55, 2
        s_add_u32 s49, s49, s3
        s_mul_i32 s49, s49, %d
        s_lshl_b32 s45, s48, 7
        s_add_u32 s49, s49, s45
        s_bitset1_b32 s49, 21
        s_add_u32 s45, s49, %d
        v_mul_u32_u24 v12, 288, v4
        v_add_lshl_u32 v12, v12, v5, 4
        v_mov_b32 v120, -1
        v_mov_b32 v121, -1
        v_mov_b32 v122, -1
        v_mov_b32 v123, -1
        s_mov_b32 s6, %d
        """ % (16 * KVR, 8 * KVR, WS_SIZE))
        assert KVT == 1 << 21
        if not C["cls1"]:
            p.vm("buffer_store_dwordx4 v[120:123], v12, %s, s49 offen sc1" % WS, "clr1")
            p.vm("buffer_store_dwordx4 v[120:123], v12, %s, s45 offen sc1" % WS, "clr1")
        p("""
        v_mul_u32_u24 v9, 576, v4
        v_add_lshl_u32 v9, v9, v5, 4
        v_add_u32 v9, s49, v9
        v_add_u32 v10, %d, v9
        v_add_u32 v4, s46, v4
        """ % KVR)
        p(self.common_setup())
        p.add(self.stamp("_kvreq"))
        p("""
        s_mov_b64 s[20:21], s[64:65]
        %s
        s_mov_b32 s56, s47
        s_sub_u32 s32, s32, 1024
        s_subb_u32 s33, s33, 0
        s_mov_b32 s34, %d
        s_lshr_b32 s64, s3, 1
        s_and_b32 s65, s3, 1
        s_lshl_b32 s57, s56, 1
        s_add_u32 s57, s57, s64
        s_lshl_b32 s57, s57, 12
        s_mul_i32 s58, s3, %d
        s_lshl_b32 s59, s65, 2
        s_add_u32 s59, s59, s58
        s_add_u32 m0, s59, %d
        s_add_u32 s58, s58, %d
        """ % (self.srd(20, 1835008), 1605632 + 1024, KP, KL + 64, KL))
        kreq = []
        for i in range(4):
            kreq += VM("buffer_load_dwordx4 v11, %s, s44 offen offset:%d lds" % (SSK, 1024 * i), "K")
        kreq += self.extras(1)
        p("s_mov_b32 s44, s57")
        if not C["kgate"]: p.add(kreq)
        p.add(self.stamp("issued"))
        p("""
        s_mul_i32 s57, s56, 9216
        s_lshl_b32 s59, s3, 10
        s_add_u32 s57, s57, s59
        s_add_u32 s57, s57, %d
        v_add_u32 v12, s57, v11
        v_add_u32 v13, 4608, v12
        """ % YY)
        p("""
        s_add_u32 s59, s65, 15
        v_min_u32 v14, s59, v1
        v_lshl_add_u32 v14, v14, 2, s58
        v_mov_b32 v104, 0
        """)
        p.ds("ds_write_b32 v14, v104")
        if C["g1map"] == 0:
            p("""
            s_lshr_b32 s12, s52, 1
            s_lshl2_add_u32 s12, s12, s54
            s_and_b32 s13, s52, 1
            s_mul_i32 s13, s13, 7
            s_add_u32 s13, s13, s55
            s_bfe_u32 s0, s54, 0x10001
            """)
        else:
            p("""
            s_and_b32 s13, s52, 3
            s_mul_i32 s13, s13, 28
            s_add_u32 s13, s13, s53
            s_and_b32 s12, s13, 7
            s_and_b32 s0, s52, 4
            s_lshl1_add_u32 s12, s0, s12
            s_lshr_b32 s13, s13, 3
            s_and_b32 s0, s53, 1
            """)
        if not C["rot"]: p("s_mov_b32 s0, 0")
        if C["g2map"] == 0:
            p("""
            s_mov_b32 s14, s55
            s_lshr_b32 s15, s52, 1
            s_lshl2_add_u32 s15, s15, s54
            s_and_b32 s57, s52, 1
            s_lshl2_add_u32 s15, s15, s57
            """)
        else:
            p("""
            s_cmp_ge_u32 s13, 7
            s_cselect_b32 s57, 1, 0
            s_mul_i32 s14, s57, 7
            s_sub_u32 s14, s13, s14
            s_lshl2_add_u32 s15, s12, s57
            """)
        p("""
        v_mul_u32_u24 v16, %d, v5
        v_lshl_add_u32 v16, v4, 2, v16
        v_add_u32 v16, %d, v16
        v_add_u32 v17, %d, v16
        v_add_u32 v18, %d, v16
        s_lshl_b32 s61, s13, 13
        s_lshl_b32 s57, s13, 8
        s_mul_i32 s58, s3, %d
        s_add_u32 s57, s57, s58
        v_bfe_u32 v14, v1, 2, 2
        v_mul_u32_u24 v20, 3584, v14
        v_lshrrev_b32 v15, 4, v1
        v_lshl_add_u32 v20, v15, 6, v20
        v_and_b32 v15, 3, v1
        v_lshl_add_u32 v20, v15, 4, v20
        v_add_u32 v20, s57, v20
        v_lshlrev_b32 v21, 6, v14
        v_lshl_add_u32 v21, v15, 3, v21
        v_bfe_u32 v15, v1, 4, 1
        v_lshl_add_u32 v21, v15, 5, v21
        v_mov_b32 v23, v21
        v_lshrrev_b32 v15, 5, v1
        v_lshl_add_u32 v21, v15, 12, v21
        v_lshl_add_u32 v23, v15, 8, v23
        s_lshl_b32 s57, s3, 8
        v_add_u32 v21, s57, v21
        v_add_u32 v22, %d, v21
        s_mul_i32 s57, s3, %d
        s_add_u32 s57, s57, %d
        v_add_u32 v23, s57, v23
        s_mul_i32 s0, s0, 802816
        s_sub_u32 s1, 802816, s0
        s_lshl_b32 s60, s3, 11
        s_add_u32 s61, s61, s60
        s_mul_i32 s57, s12, %d
        s_add_u32 s61, s61, s57
        s_add_u32 s61, s61, %d
        s_lshl_b32 s57, s55, 2
        s_add_u32 s57, s57, s3
        s_lshl_b32 s57, s57, 5
        s_add_u32 s57, s57, s48
        s_lshl_b32 s57, s57, FSH
        s_add_u32 s57, s57, %d
        v_add_u32 v14, s57, v11
        s_lshr_b32 s57, s56, 3
        s_lshl_b32 s57, s57, FSH+5
        s_add_u32 s57, s57, %d
        v_lshrrev_b32 v15, 3, v0
        v_lshl_add_u32 v15, v15, FSH, s57
        """ % (KVP, KVL, KVP, 9 * KVP, 4 * 3584, HALF, RA, R0, 4 * 112 * 1024, HH, FLAGA, FLAGA))
        if C["g116"]:
            p("""
            s_lshl_b32 s57, s64, 5
            v_xor_b32 v20, s57, v20
            v_lshrrev_b32 v22, 5, v1
            v_bfe_u32 v19, v1, 4, 1
            v_add_lshl_u32 v22, v22, v19, 12
            v_add_u32 v21, v21, v22
            v_xor_b32 v22, 32, v21
            s_lshl2_add_u32 s57, s13, s3
            s_lshl_b32 s57, s57, 10
            s_sub_u32 s61, s61, s57
            """)
        self.Q = self.wgu_dma(0) + self.wgu_dma(1)
        if not C["kgate"]: p.add(flat(self.Q[:C["q_w1"]]))
        p("s_waitcnt lgkmcnt(0)\ns_mov_b32 s49, s66\ns_add_u32 s50, s50, 1\ns_addc_u32 s51, s51, 0\nv_mov_b32 v124, s50\nv_mov_b32 v125, s51")
        if C["warm_at"] == 1: self.warmup()
        p.add(self.stamp("_epoch"))
        if C["kgate"]:
            p.wvm(("kv1", "kv2", "kv3", "kv")[C["kgate"] - 1])
            p.add(kreq + flat(self.Q[:C["q_w1"]]))
        if C["warm_at"] == 3: self.warmup()
        p.wvm("kv")
        p.add(self.stamp("_kvland"))
        p("s_barrier")
        p.add(self.stamp("k_in"))
        p.ds("ds_read2_b32 v[32:33], v16 offset0:160 offset1:192", "k0")
        p.ds("ds_read_b32 v34, v16 offset:896", "k0")
        for r in range(4):
            p.ds("ds_read2_b32 %s, v17 offset0:%d offset1:%d" % (v(36 + 2 * r, 2), 64 * r, 64 * r + 32), "k%d" % (r + 1))
        for r in range(4):
            p.ds("ds_read2_b32 %s, v18 offset0:%d offset1:%d" % (v(44 + 2 * r, 2), 64 * r, 64 * r + 32), "v")
        if not C["cls1"]:
            p.wvm("clr1")
            p.add(self.line_flag("flagA_st"))
        for jj in range(4):
            lo, hi = 52 + jj // 2, 54 + jj // 2
            if jj % 2 == 0:
                p("v_lshlrev_b32 v%d, 16, v%d\nv_lshlrev_b32 v%d, 16, v%d" % (56 + 2 * jj, lo, 57 + 2 * jj, hi))
            else:
                p("v_and_b32 v%d, 0xffff0000, v%d\nv_and_b32 v%d, 0xffff0000, v%d" % (56 + 2 * jj, lo, 57 + 2 * jj, hi))
        mark = len(p.items)
        for r in range(11):
            p.wds("k0" if r < 3 else "k%d" % ((r - 3) // 2 + 1))
            p.add(self.unpack(64 + 2 * r, 32 + r if r < 3 else 33 + r))
        for jj in range(4):
            for r in range(8):
                kk = v(64 + 2 * (r + 3 - jj), 2); acc = v(86 + 2 * r, 2); w = v(56 + 2 * jj, 2)
                p("v_pk_mul_f32 %s, %s, %s" % (acc, kk, w) if jj == 0 else "v_pk_fma_f32 %s, %s, %s, %s" % (acc, kk, w, acc))
        self.ldA = "buffer_load_dwordx2 v[126:127], v15, %s, 0 offen sc1" % WS
        if C["fa_early"]: p.vm(self.ldA, "flagA_ld")
        p.wds("v")
        for r in range(8):
            p.add(self.unpack(64 + 2 * r, 44 + r))
        p.items[mark:] = flat(weave([[]] + singles(p.items[mark:]), self.Q[C["q_w1"]:C["q_w1"] + C["q_p1"]]))
        for r in range(8):
            p("v_pk_mul_f32 %s, %s, %s" % (v(86 + 2 * r, 2), v(86 + 2 * r, 2), v(64 + 2 * r, 2)))
        for e in range(2):
            for m in range(4):
                p("v_cvt_pk_bf16_f32 v%d, v%d, v%d" % (104 + 4 * e + m, 86 + 2 * (7 - 2 * m) + e, 86 + 2 * (6 - 2 * m) + e))
            for m in range(4):
                p("v_and_b32 v%d, -2, v%d" % (104 + 4 * e + m, 104 + 4 * e + m))
            p.vm("buffer_store_dwordx4 %s, v%d, %s, 0 offen sc1" % (v(104 + 4 * e, 4), 9 + e, WS), "kv_st")
        p.add(self.stamp("kv_st"))
        if C.get("dbg_ack"):
            p.wvm("flagA_st"); p.add(self.stamp("_faack"))
            p.wvm("kv_st"); p.add(self.stamp("_kvack"))

    def conv(self):
        p, C = self.p, self.cfg
        ldA = self.ldA
        a0 = I("""
        s_mul_i32 s58, s56, 9216
        s_add_u32 s62, s58, %d
        s_add_u32 s63, s62, 4608
        v_and_b32 v36, 7, v0
        v_bfe_u32 v37, v0, 3, 2
        v_lshrrev_b32 v38, 5, v0
        v_lshl_add_u32 v39, v36, 2, v37
        v_lshl_add_u32 v39, v38, 5, v39
        v_lshlrev_b32 v30, 4, v39
        v_and_b32 v4, 15, v1
        v_lshrrev_b32 v5, 4, v1
        v_and_b32 v2, 1, v1
        v_xor_b32 v2, 1, v2
        v_mul_u32_u24 v46, %d, v2
        v_lshl_add_u32 v46, v4, 2, v46
        v_lshl_add_u32 v46, v5, 4, v46
        s_mul_i32 s57, s64, %d
        s_lshl_b32 s58, s65, 8
        s_add_u32 s57, s57, s58
        s_add_u32 s57, s57, %d
        v_add_u32 v46, s57, v46
        v_mov_b32 v32, 0
        v_mov_b32 v33, 0
        v_mov_b32 v34, 0
        v_mov_b32 v35, 0
        s_mul_i32 s57, s65, %d
        s_add_u32 s57, s57, %d
        v_add_u32 v44, s57, v11
        v_mov_b32 v45, s57
        """ % (KVT, KP + 4, 2 * KP, KL + 4, UCH, U0 - 1024))
        kr = [WVM("K") + I("s_barrier") + self.stamp("_Kbar"), DS("ds_write_b128 v44, v[32:35]"), DS("ds_write_b16 v45, v32 offset:%d" % (1024 + 142))]
        for z1 in range(8):
            for f in range(4):
                for i in range(2):
                    kr.append(DS("ds_read_b64 %s, v46 offset:%d" % (v(128 + 16 * z1 + 4 * f + 2 * i, 2), 512 * z1 + 64 * f + 8 * i), "kr"))
        ldU = ["buffer_load_dwordx4 v[104:107], v30, %s, s62 offen sc1" % WS,
               "buffer_load_dwordx4 v[108:111], v30, %s, s63 offen sc1" % WS]
        a1 = """
        v_lshlrev_b32 v9, 4, v36
        v_lshl_add_u32 v9, v37, 8, v9
        v_lshl_add_u32 v9, v38, 10, v9
        v_add_u32 v9, %d, v9
        v_add_u32 v39, 1, v39
        v_bfe_u32 v10, v39, 2, 3
        v_lshlrev_b32 v10, 4, v10
        v_and_b32 v36, 3, v39
        v_lshl_add_u32 v10, v36, 8, v10
        v_lshrrev_b32 v36, 5, v39
        v_lshl_add_u32 v10, v36, 10, v10
        v_add_u32 v10, %d, v10
        v_cmp_eq_u32 vcc, 0xff, v0
        v_mov_b32 v36, %d
        s_mul_i32 s57, s64, %d
        v_cndmask_b32 v10, v10, v36, vcc
        s_add_u32 s57, s57, %d
        v_lshlrev_b32 v36, 7, v2
        v_lshlrev_b32 v37, 8, v5
        v_sub_u32 v38, v36, v37
        v_add_u32 v38, s57, v38
        v_lshrrev_b32 v39, 1, v4
        v_add_u32 v36, v36, v37
        v_lshl_add_u32 v25, v39, 4, v36
        s_lshl_b32 s57, s3, 10
        s_add_u32 s58, s57, %d
        v_add_u32 v25, s58, v25
        s_add_u32 s58, s57, %d
        v_add_u32 v3, s58, v11
        s_lshl_b32 s57, s3, 12
        s_add_u32 s57, s57, %d
        v_add_u32 v2, s57, v11
        s_cmp_eq_u32 s3, 3
        s_cselect_b32 s58, 0x2000, 0
        s_add_u32 s58, s58, 0x4000
        v_add_u32 v31, s58, v2
        s_lshl_b32 s57, s65, 2
        v_subrev_u32 v39, s57, v39
        """ % (U0, U0 + 142, U0 - 2048, UCH, U0 + 768, U0, EX, EX)
        for f in range(4):
            a1 += """
            v_ashrrev_i32 v36, 3, v39
            v_and_b32 v37, 7, v39
            v_lshl_add_u32 v%d, v36, 10, v38
            v_lshl_add_u32 v%d, v37, 4, v%d
            """ % (16 + f, 16 + f, 16 + f)
            if f < 3: a1 += "v_subrev_u32 v39, 1, v39\n"
        a1 += """
        s_lshl_b32 s57, s2, FSH
        s_add_u32 s57, s57, %d
        s_cmp_eq_u32 s3, 0
        s_cselect_b32 s57, s57, 0x%x
        v_add_u32 v14, s57, v11
        """ % (FLAGB, OOB)
        n0 = C["q_w1"] + C["q_p1"]
        n1 = n0 + C["q_w2"]
        n2 = n1 + C["q_w3"]
        assert n0 % 2 == 0 and n1 % 2 == 0 and n2 % 2 == 0
        ln1 = singles(WVM("x") + self.ln1()) if C["x_at"] < 3 else []
        parts = dict(a=singles(a0 + I(a1)), k=kr, l=ln1)
        first, second = C["w2"].split("-")
        w2 = [g for c in first for g in parts[c]]
        C["fa_at"] = min(C["fa_at"], len(w2) - 1)
        page = I("s_branch L_page\n.p2align 12\nL_page:") if C["warm"] else []
        if C["cls1"]:
            k = C["fa_at"]
            p("v_mov_b32 v47, v14")
            p.add(page + self.extras(2))
            p.add(flat(w2[:k]))
            p.wvm("kv_st")
            p.add([(x[0], x[1].replace("v14,", "v47,"), x[2]) for x in self.line_flag("flagA_st")])
            p.add(self.stamp("_kprep1"))
            p.add(flat(weave(w2[k:], self.Q[n0:n1])))
            if C["warm_at"] == 2: self.warmup()
            p.vm(ldA, "flagA_ld")
        else:
            w2[C["fa_at"]] = w2[C["fa_at"]] + ([] if C["fa_early"] else VM(ldA, "flagA_ld")) + page + self.extras(2)
            p.add(flat(weave(w2, self.Q[n0:n1], C["fa_at"])))
            p.add(self.stamp("_kprep1"))
            if C["warm_at"] == 2: self.warmup()
        p.wvm("flagA_ld")
        p.add(self.stamp("flagA"))
        p.add(self.spin("fa", [ldA], ["v_cmp_ne_u64 vcc, s[50:51], v[126:127]"]))
        p.wvm("kv_st")
        p.add(self.stamp("_faok"))
        for l in ldU: p.vm(l, "u")
        p.add(self.extras(3))
        w3 = [g for c in second for g in parts[c]]
        p.add(flat(weave(w3, self.Q[n1:n2], 0, max(1, int(len(w3) * C["w3f"])))) if w3 else flat(self.Q[n1:n2]))
        if C["warm_at"] == 4: self.warmup()
        p.add(self.stamp("_kprep2"))
        p.wvm("u")
        p.add(self.stamp("_u1"))
        if not C["cls1"]: p.add(self.spin("u", ldU, self.phase(36, range(104, 112), 0)))
        p.add(self.stamp("u_in"))
        for c in range(2):
            d = 104 + 4 * c
            p.ds("ds_write_b128 v9, %s offset:%d" % (v(d, 4), c * UCH))
            for m in range(3):
                p("v_alignbit_b32 v%d, v%d, v%d, 16" % (36 + 4 * c + m, d + m + 1, d + m))
            p.ds("ds_write_b16_d16_hi v9, v%d offset:%d" % (d + 3, c * UCH + 140))
            p.ds("ds_write_b16 v10, v%d offset:%d" % (d, c * UCH))
            p.ds("ds_write_b96 v9, %s offset:%d" % (v(36 + 4 * c, 3), c * UCH + 128))
        p("s_lshl_b32 s62, s49, 16\ns_and_b32 s63, s49, 0xffff0000")
        p("s_waitcnt lgkmcnt(0)\ns_barrier")
        p.add(self.stamp("_ubar"))
        def bread(f, tau): return DS("ds_read_b128 %s, v%d offset:%d" % (ar(224 + 4 * tau, 4), 16 + f, 1024 * tau), "b%d_%d" % (f, tau))
        M = []
        for f in range(4):
            for T in range(8):
                for z1 in range(T, -1, -1):
                    tau = T - z1
                    g = (WDS("b%d_%d" % (f, T)) if z1 == 0 else []) + I("v_mfma_f32_16x16x32_bf16 %s, %s, %s, %s" % (
                        v(32 + 4 * T, 4), v(128 + 16 * z1 + 4 * f, 4), ar(224 + 4 * tau, 4),
                        "0" if (f == 0 and z1 == T) else v(32 + 4 * T, 4)))
                    if T == 7 and f < 3 and tau < 4: g += bread(f + 1, tau)
                    M.append(g)
            for tau in range(4, 8):
                M[36 * f + 2 * (tau - 4) + (1 if f else 0)] += bread(f, tau)
        def pw(T): return DS("ds_write_b128 v3, %s offset:%d" % (v(32 + 4 * T, 4), exoff(T)), "pw%d" % T)
        def du(half):
            b = 64 + 8 * half
            g = [DS("ds_read_b128 %s, v25 offset:%d" % (v(80 + 4 * c, 4), c * UCH + 4096 * half), "du%d" % half) for c in range(2)]
            for c in range(2):
                for r in range(4):
                    g.append((WDS("du%d" % half) if c + r == 0 else []) + I("v_lshlrev_b32 v%d, 16, v%d" % (b + 4 * c + r, 80 + 4 * c + 3 - r), "du%d" % half))
            for c in range(2):
                for r in range(4):
                    g.append(I("v_mul_f32 v%d, s%d, v%d" % (b + 4 * c + r, 62 + c, b + 4 * c + r), "du%d" % half))
            return g
        def fin():
            g = []
            for half in range(2):
                for w in range(4):
                    g += DS("ds_read_b128 %s, v%d offset:%d" % (v(128 + 16 * half + 4 * w, 4), (2, 31)[half], 1024 * w), "pr%d_%d" % (half, w))
            for half in range(2):
                b = 64 + 8 * half
                for w in range(4):
                    g += WDS("pr%d_%d" % (half, w))
                    for q in range(2):
                        d = v(b + 4 * (w >> 1) + 2 * q, 2)
                        g += I("v_pk_add_f32 %s, %s, %s" % (d, d, v(128 + 16 * half + 4 * w + 2 * q, 2)))
                for r in range(4):
                    g += I("v_cvt_pk_bf16_f32 v%d, v%d, v%d" % (96 + 4 * half + r, b + r, b + 4 + r))
                for r in range(4):
                    g += I("v_or_b32 v%d, 1, v%d" % (96 + 4 * half + r, 96 + 4 * half + r))
                g += VM("buffer_store_dwordx4 %s, v%d, %s, 0 offen sc1" % (v(96 + 4 * half, 4), 12 + half, WS), "yy_st")
            return g
        ldB = "buffer_load_dwordx2 v[126:127], v14, %s, 0 offen sc1" % WS
        fb = I("v_lshlrev_b32 v14, FSH, v0\nv_add_u32 v14, %d, v14" % FLAGB) + VM(ldB, "flagB_ld")
        bx, by = C["bx"], C["by"]
        L = 108
        F = Sched(M, C["bud16"], 5)
        bv, bw = (0 if n1 >= 2 * self.nq(0) else C["bv"]), C["bw"]
        if bv: F.at("tr", bv, WVM("wq0") + I("s_barrier", "cbar"))
        F.spread("tr", self.wgu_tr(0), bv + 1, bw - 4)
        if bx > bw: F.at("tr", bw, (WDS("wtr0") + I("s_barrier", "cbar") if C["q_conv"] else []) + MARK("bw"))
        late1 = bx >= 144
        n3 = C["q_conv"]
        if late1:
            by = bw + 1
            assert n3 + C["q_w4"] <= 2 * self.nq(0)
        else:
            F.at("tr", bx, WDS("wtr0") + WVM("wq1") + self.stamp("_bx") + I("s_barrier", "cbar") + self.stamp("_bxb") + ([] if bx > bw else MARK("bw")))
            F.spread("tr", self.wgu_tr(1), bx + 1, by - 4)
        F.at("tr", by, (WDS("wtr1") + self.stamp("_by") + I("s_barrier", "cbar") if n3 > 14 else []) + MARK("by"))
        misc = [self.line_flag("flagB_st")] + self.h2_clears("clr2")
        q = [(1, 0, g) for g in (misc + self.Q[n2:] if late1 else misc[:1] + self.Q[n2:] + misc[1:])]
        q23 = self.wgu_dma(2) + self.wgu_dma(3)
        self.q23 = list(q23[n3:])
        q23[0] = NEED("bw") + q23[0]
        assert n3 % 2 == 0
        lm = C["latemod"]
        q += ([] if lm else [(C["fb_at"], 0, fb)]) + [(bw + 1 if k < 14 else by + 1, 0, g) for k, g in enumerate(q23[:n3])]
        F.requests([q], C["cgap"], 1)
        F.spread("fin", du(0), 6, 40)
        F.spread("fin", du(1), by, L + 20)
        for T, at in ((0, 5), (1, 9), (2, 13), (3, 17), (4, 21), (5, 27)): F.at("pw", L + at, pw(T))
        F.at("pw", L + 29, NEED("by") + I("s_barrier"))
        F.at("pw", L + 34, pw(6))
        for k in (20, 58, 84, 96, 108, 118): M[k] += self.stamp("_m%d" % k)
        p.add(flat([bread(0, tau) for tau in range(4)]))
        p.add(F.run(["vm", "tr", "pw", "fin"], "conv" if "-w" in sys.argv else None))
        p.add(self.stamp("_c7"))
        p.add(pw(7))
        assert late1
        if lm:
            p.add(fb[:-1])
            p.wvm("clr2")
            if not C["late2"]: p.wvm("wq1")
        else:
            p.wvm("flagB_ld")
            p.add(self.spin("fb", [ldB], ["v_cmp_ne_u64 vcc, s[50:51], v[126:127]"]))
            p(self.mod_addr())
        p("s_waitcnt lgkmcnt(0)\ns_barrier")
        p.add(self.stamp("conv"))
        f = fin()
        p.add(f[:8] + (self.mod_dma() if not lm else fb[-1:] if lm == 1 else []) + f[8:] + (fb[-1:] if lm == 2 else []))
        p.add(self.stamp("yy_st"))
        n4 = min(C["q_w4"], len(self.q23))
        assert n4 % 2 == 0
        assert not C["late2"] or (lm and n3 + n4 + C["q_w5"] <= 2 * self.nq(0))
        w4 = ([] if C["late2"] else flat(self.wgu_tr(1))) + (WVM("x") + self.ln1() if C["x_at"] >= 3 else [])
        p.add(flat(weave(singles(w4), self.q23[:n4])) if w4 else flat(self.q23[:n4]))
        self.q2_early = n3 + n4 >= 2 * self.nq(0)
        self.q23 = self.q23[n4:]
        self.ldB = ldB

    def wd_l2(self, lo, hi):
        if self.cfg["g2map"]:
            lanes, rows, col = "v_lshrrev_b32 v2, 2, v1\nv_mul_u32_u24 v2, 7, v2\nv_and_b32 v3, 3, v1", 16, "s_and_b32 s58, s52, 1\ns_mul_i32 s58, s58, 384"
        else:
            lanes, rows, col = "v_lshrrev_b32 v2, 3, v1\nv_mul_u32_u24 v2, 7, v2\nv_and_b32 v3, 7, v1\nv_min_u32 v3, 6, v3", 8, "s_mov_b32 s58, 0"
        s = lanes + """
        v_add_lshl_u32 v2, v2, v3, 7
        %s
        s_mul_i32 s57, s3, %d
        s_add_u32 s58, s58, s57
        s_sub_u32 s57, s53, 28
        s_mul_i32 s57, s57, %d
        s_add_u32 s57, s57, s58
        """ % (col, 448 * 896, rows * 896)
        for i in range(lo, min(hi, 112 // rows)):
            s += "s_add_u32 s58, s57, %d\nbuffer_load_dword v%d, v2, %s, s58 offen\n" % (i * 4 * rows * 896, 140 + i, SD)
        return s

    def mod_addr(self):
        return """
        s_mul_i32 s57, s3, 3072
        s_lshl_b32 s58, s57, 2
        s_add_u32 m0, s58, %d
        s_add_u32 s57, s57, %d
        """ % (R0 + MODO, MOD)

    def mod_dma(self):
        return flat([VM("buffer_load_dwordx4 v11, %s, s57 offen offset:%d sc1 lds" % (WS, 1024 * i), "mod") for i in range(3)])

    def helper(self):
        o, C = self.p.out, self.cfg
        o(".p2align 12\nL_helper:")
        def wld(i):
            o("buffer_load_dwordx4 %s, v8, %s, s44 offen" % (v(128 + 4 * i, 4), SSK))
            if i < 27: o("s_add_u32 s44, s44, s46")
        setup = self.common_setup() + "s_mov_b32 s6, %d" % WS_SIZE + """
        v_mov_b32 v120, -1
        v_mov_b32 v121, -1
        v_mov_b32 v122, -1
        v_mov_b32 v123, -1
        v_mov_b32 v20, 0x%x
        v_mov_b32 v21, 0
        v_mov_b32 v22, 0
        s_mov_b32 s60, 0
        s_mov_b32 s1, 0
        s_mov_b32 s14, 0
        s_mov_b32 s15, 0
        s_and_b32 s57, s3, 1
        s_cmp_eq_u32 s57, 0
        s_cselect_b32 s8, s28, s32
        s_cselect_b32 s9, s29, s33
        %s
        v_lshrrev_b32 v16, 4, v1
        v_mul_u32_u24 v16, %d, v16
        v_and_b32 v17, 15, v1
        v_min_u32 v17, 13, v17
        v_add_lshl_u32 v16, v16, v17, 7
        s_lshr_b32 s57, s52, 1
        s_mul_i32 s57, s57, 3584
        s_and_b32 s58, s52, 1
        s_mul_i32 s58, s58, 1792
        s_add_u32 s45, s57, s58
        """ % (OOB, self.srd(8, "s30"), 4 * 28)
        rows = "\n".join(txt(grp) for grp in self.x_loads() + self.h2_clears(None))
        A = 10
        o(setup)
        o("s_waitcnt vmcnt(%d)" % A)
        o("v_lshlrev_b32 v10, 16, v5\nv_and_b32 v9, 0xffff0000, v5")
        for r in (10, 9):
            o("""
            v_mul_f32 v12, 0xbfb8aa3b, v%d
            v_exp_f32 v12, v12
            v_add_f32 v12, 1.0, v12
            v_rcp_f32 v12, v12
            v_mul_f32 v%d, v%d, v12
            """ % (r, r, r))
        o("""
        v_cvt_pk_bf16_f32 v5, v10, v9
        v_lshlrev_b32 v10, 16, v5
        v_and_b32 v9, 0xffff0000, v5
        v_and_b32 v12, 7, v0
        v_lshlrev_b32 v12, 8, v12
        v_lshrrev_b32 v13, 3, v0
        v_lshl_add_u32 v12, v13, 2, v12
        ds_write2_b32 v12, v10, v9 offset0:0 offset1:32
        v_lshlrev_b32 v12, 7, v14
        """)
        for i in range(A, A + 4): wld(i)
        A += 4
        o("s_waitcnt lgkmcnt(0)\ns_barrier")
        for q in range(7):
            o("ds_read_b128 %s, v12 offset:%d" % (v(32 + 4 * q, 4), 16 * q))
        o("s_waitcnt lgkmcnt(0)")
        extra = 0
        for i in range(28):
            if i + A < 28: wld(i + A)
            elif i + A == 28:
                o(txt(self.stamp("_ubar")))
                o(rows); extra = 4
            o("s_waitcnt vmcnt(%d)" % (min(27, i + A) - i + extra))
            for m in range(4):
                o(txt(self.unpack(64 + 2 * m, 128 + 4 * i + m)))
            for m in range(4):
                if i == 0:
                    o("v_pk_mul_f32 %s, %s, v[32:33] op_sel:[0,0] op_sel_hi:[1,0]" % (v(72 + 2 * m, 2), v(64 + 2 * m, 2)))
                else:
                    o("v_pk_fma_f32 %s, %s, %s, %s op_sel:[0,%d,0] op_sel_hi:[1,%d,1]" % (
                        v(72 + 2 * m, 2), v(64 + 2 * m, 2), v(32 + (i & ~1), 2), v(72 + 2 * m, 2), i & 1, i & 1))
        o(txt(self.stamp("_bx")))
        o("""
        v_lshlrev_b32 v12, 5, v0
        ds_write_b128 v12, v[72:75] offset:4096
        ds_write_b128 v12, v[76:79] offset:4112
        v_lshlrev_b32 v13, 2, v1
        v_lshlrev_b32 v12, 3, v1
        s_waitcnt lgkmcnt(0)
        s_barrier
        s_cmp_lg_u32 s3, 0
        s_cbranch_scc1 L_h_rows
        """)
        for q in range(16):
            o("ds_read_b64 %s, v12 offset:%d" % (v(32 + 2 * q, 2), 4096 + 512 * q))
        o("""
        v_add_u32 v9, s49, v13
        v_subrev_u32 v10, 896, v9
        v_cmp_gt_u32 vcc, 896, v10
        v_subrev_u32 v10, 3584, v9
        v_mov_b32 v9, 896
        v_cmp_gt_u32 s[58:59], v9, v10
        s_or_b64 vcc, vcc, s[58:59]
        v_cndmask_b32 v9, 0, 1.0, vcc
        s_waitcnt lgkmcnt(0)
        """)
        for st in (16, 8, 4, 2):
            for q in range(0, st, 2):
                o("v_pk_add_f32 %s, %s, %s" % (v(32 + q, 2), v(32 + q, 2), v(32 + st + q, 2)))
        o("""
        v_cvt_pk_bf16_f32 v34, v32, v33
        v_lshlrev_b32 v32, 16, v34
        v_and_b32 v33, 0xffff0000, v34
        v_add_f32 v32, v32, v9
        v_add_f32 v33, v33, v9
        v_cvt_pk_bf16_f32 v35, v32, v33
        v_lshlrev_b32 v32, 16, v35
        v_and_b32 v33, 0xffff0000, v35
        v_bfe_u32 v9, v1, 1, 1
        v_lshrrev_b32 v10, 5, v1
        v_xor_b32 v9, v9, v10
        v_lshlrev_b32 v12, 8, v10
        v_lshl_add_u32 v12, v9, 7, v12
        v_bfe_u32 v9, v1, 2, 3
        v_lshl_add_u32 v12, v9, 4, v12
        v_and_b32 v9, 1, v1
        v_lshl_add_u32 v12, v9, 3, v12
        s_lshl_b32 s57, s48, 1
        v_add_u32 v9, s57, v10
        v_mul_u32_u24 v9, 37, v9
        v_lshrrev_b32 v9, 8, v9
        v_lshl_add_u32 v12, v9, 8, v12
        s_lshl_b32 s57, s49, 1
        s_add_u32 s57, s57, %d
        s_add_u32 s58, s49, %d
        buffer_store_dwordx2 v[32:33], v12, %s, s57 offen sc1
        buffer_store_dword v34, v13, %s, s58 offen sc1
        s_branch L_h_rows
        L_h_free:
        """ % (MOD, MODB, WS, WS))
        o(setup)
        o(rows)
        if "m" in C["mpf"]:
            n = C["hm"]
            o("""
            s_cmp_lg_u32 s53, 31
            s_cbranch_scc1 L_h_rows
            s_mul_i32 s57, s3, %d
            s_lshl_b32 s58, s52, 8
            s_add_u32 s57, s57, s58
            s_add_u32 s57, s57, %d
            s_cmp_lt_u32 s52, 5
            s_cselect_b32 s58, 2, 1
            v_lshrrev_b32 v18, 3, v1
            v_mul_u32_u24 v18, 42, v18
            v_bfe_u32 v19, v1, 1, 2
            v_min_u32 v19, s58, v19
            v_lshl_add_u32 v18, v19, 4, v18
            v_and_b32 v19, 1, v1
            v_add_lshl_u32 v18, v18, v19, 7
            """ % (8 * 5376, (448 - 32 * n) * 5376))
            for i in range(n):
                o("buffer_load_dword v%d, v18, %s, s57 offen" % (128 + i, SSK))
                if i < n - 1: o("s_add_u32 s57, s57, %d" % (32 * 5376))
        if "a" in C["mpf"]:
            o("s_cmp_lg_u32 s53, 31\ns_cbranch_scc1 L_h_rows\ns_lshr_b32 s57, s3, 1\ns_mul_i32 s57, s57, %d\ns_add_u32 s57, s57, s45" % (16 * 3584))
            for i in range(7):
                o("buffer_load_dword v%d, v16, %s, s57 offen" % (128 + i, SK))
                if i < 6: o("s_add_u32 s57, s57, %d" % (32 * 3584))
        o("""
        L_h_rows:
        s_waitcnt vmcnt(0) lgkmcnt(0)
        s_barrier
        s_add_u32 s50, s50, 1
        s_addc_u32 s51, s51, 0
        v_mov_b32 v124, s50
        v_mov_b32 v125, s51
        s_lshl_b32 s57, s2, FSH
        s_add_u32 s57, s57, %d
        s_cmp_eq_u32 s3, 0
        s_cselect_b32 s57, s57, 0x%x
        v_add_u32 v14, s57, v11
        """ % (FLAGB, OOB))
        o(txt(self.line_flag(None)))
        o(txt(self.stamp("_by")))
        if "b" in C["mpf"]:
            o("""
            s_sub_u32 s57, s53, 28
            s_lshl_b32 s57, s57, 1
            s_lshr_b32 s58, s3, 1
            s_add_u32 s57, s57, s58
            s_mul_i32 s57, s57, %d
            s_add_u32 s57, s57, s45
            s_add_u32 s57, s57, %d
            buffer_load_dword v128, v16, %s, s57 offen
            s_add_u32 s57, s57, %d
            buffer_load_dword v129, v16, %s, s57 offen
            """ % (16 * 3584, 224 * 3584, SK, 128 * 3584, SK))
        if "d" in C["mpf"]:
            o("""
            s_lshl_b32 s57, s48, 2
            s_add_u32 s57, s57, s3
            s_lshl_b32 s57, s57, 13
            v_lshlrev_b32 v2, 7, v1
            buffer_load_dword v130, v2, %s, s57 offen
            s_add_u32 s57, s57, 0x100000
            buffer_load_dword v131, v2, %s, s57 offen
            """ % (SD, SD))
        if "l" in C["mpf"]: o(self.wd_l2(0, C["l2n"][0]))
        if "e" in C["mpf"]:
            o("""
            s_mul_i32 s57, s3, 49
            s_add_u32 s57, s57, s48
            s_lshl_b32 s57, s57, 13
            v_lshlrev_b32 v2, 7, v1
            buffer_load_dword v132, v2, %s, s57 offen
            s_lshl2_add_u32 s57, s48, s3
            s_sub_u32 s57, s57, 84
            s_cmp_lt_u32 s57, 8
            s_cbranch_scc0 L_h_ln2
            s_lshl_b32 s57, s57, 13
            s_add_u32 s57, s57, %d
            buffer_load_dword v137, v2, %s, s57 offen
            L_h_ln2:
            """ % (SD, FLAGC, WS))
        if "e" in C["mpf"] and C["t2"] == 0:
            o("""
            s_mul_i32 s57, s3, 49
            s_add_u32 s57, s57, s48
            s_add_u32 s57, s57, 17
            s_lshl_b32 s57, s57, 13
            s_cmp_ge_u32 s48, 15
            s_cselect_b32 s57, s57, 0x%x
            v_lshlrev_b32 v2, 7, v1
            buffer_load_dword v133, v2, %s, s57 offen
            """ % (OOB, SD))
        if "f" in C["mpf"]:
            o("""
            s_lshl2_add_u32 s57, s48, s3
            s_lshl_b32 s57, s57, 13
            v_lshlrev_b32 v2, 7, v1
            buffer_load_dword v132, v2, %s, s57 offen
            s_cmp_lt_u32 s48, 21
            s_cbranch_scc1 L_h_ln
            """ % SD)
            for i in range(2):
                o("s_add_u32 s57, s57, %d" % (44 * 8192))
                o("buffer_load_dword v%d, v2, %s, s57 offen" % (133 + i, SD))
            if "F" in C["mpf"]:
                o("s_sub_u32 s57, s48, 21\ns_lshl_b32 s57, s57, 2\ns_add_u32 s57, s57, s3\ns_min_u32 s57, s57, 7\ns_lshl_b32 s57, s57, 13\ns_add_u32 s57, s57, %d" % FLAGC)
                o("buffer_load_dword v137, v2, %s, s57 offen" % WS)
            o("L_h_ln:")
        o(txt(self.ln1()))
        o("v_lshlrev_b32 v14, FSH, v0\nv_add_u32 v14, %d, v14\n%s\ns_waitcnt vmcnt(0)" % (FLAGB, self.ldB))
        o("""
        s_mov_b32 s67, 0
        L_h_fb:
        v_cmp_ne_u64 vcc, s[50:51], v[126:127]
        s_cbranch_vccz L_h_fbok
        s_sleep %d
        %s
        s_waitcnt vmcnt(0)
        s_add_u32 s67, s67, 1
        s_cmp_lt_u32 s67, %d
        s_cbranch_scc1 L_h_fb
        L_h_fbok:
        """ % (C["sl_h"], self.ldB, SPIN))
        if not C["latemod"]: o(self.mod_addr() + "\ns_barrier\n" + txt(self.mod_dma()) + "\ns_waitcnt vmcnt(0)")
        o("%s\ns_branch L_stageB" % txt(self.stamp("yy_st")))

    def stageB(self):
        p, C = self.p, self.cfg
        lm = C["latemod"]
        assert lm
        p("L_stageB:")
        norm = []
        for i in range(8):
            norm += self.unpack(32 + 2 * i, 112 + i)
        for i in range(8):
            norm += I("v_pk_fma_f32 %s, %s, v[6:7], v[6:7] op_sel:[0,0,1] op_sel_hi:[1,0,1]" % (v(48 + 2 * i, 2), v(32 + 2 * i, 2)))
        ay = I("""
        v_lshrrev_b32 v4, 1, v1
        v_min_u32 v4, 27, v4
        v_and_b32 v5, 1, v1
        s_mul_i32 s57, s3, 56
        v_add_u32 v4, s57, v4
        v_mul_u32_u24 v13, 9216, v4
        v_lshl_add_u32 v13, v5, 4, v13
        s_lshl_b32 s62, s52, 10
        s_lshl_b32 s58, s53, 5
        s_add_u32 s62, s62, s58
        s_and_b32 s58, s52, 4
        s_lshl_b32 s58, s58, 7
        s_add_u32 s62, s62, s58
        s_add_u32 s62, s62, %d
        s_add_u32 s63, s62, %d
        """ % (YY, 28 * 9216))
        am = I("""
        v_min_u32 v25, 23, v24
        v_and_b32 v8, 24, v24
        v_add_lshl_u32 v8, v8, v24, 4
        v_and_b32 v9, 24, v25
        v_add_lshl_u32 v9, v9, v25, 4
        v_bfe_u32 v10, v1, 3, 1
        v_lshl_add_u32 v8, v10, 7, v8
        v_bfe_u32 v10, v25, 3, 1
        v_lshl_add_u32 v9, v10, 7, v9
        v_add_u32 v8, %d, v8
        v_add_u32 v9, %d, v9
        v_xor_b32 v100, 128, v8
        v_xor_b32 v101, 128, v9
        """ % (R0 + MODO, R0 + MODO))
        ab = I("""
        v_mul_u32_u24 v16, %d, v5
        v_lshl_add_u32 v16, v4, 2, v16
        v_add_u32 v16, %d, v16
        v_add_u32 v17, %d, v16
        v_add_u32 v18, 112, v16
        v_add_u32 v19, 112, v17
        v_lshrrev_b32 v4, 5, v1
        v_mul_u32_u24 v4, %d, v4
        s_mul_i32 s57, s3, %d
        s_add_u32 s57, s57, %d
        v_add_u32 v4, s57, v4
        v_lshl_add_u32 v30, v24, 4, v4
        v_cmp_gt_u32 vcc, 24, v24
        v_lshl_add_u32 v31, v25, 4, v4
        v_add_u32 v31, 512, v31
        v_cndmask_b32 v12, 0, -1, vcc
        """ % (2 * RA, R0 + BSO, RA, BSP, RA, R0 + BSO))
        def mreads(vecs):
            return flat([DS("ds_read_b128 %s, v%d offset:%d" % (v(168 + 16 * vec + 8 * h + 4 * (q ^ (vec & 1)), 4), (8, 100)[q] + h,
                         RA * ((2 * vec + h) // 3) + 1024 * ((2 * vec + h) % 3)), "m%d" % vec) for vec in vecs for h in range(2) for q in range(2)])
        amul = WDS("m1")
        for i in range(8):
            amul += I("v_pk_fma_f32 %s, %s, %s, %s" % (v(48 + 2 * i, 2), v(48 + 2 * i, 2), v(184 + 2 * i, 2), v(168 + 2 * i, 2)))
        amul += WDS("m2")
        for i in range(8):
            amul += I("v_pk_mul_f32 %s, %s, %s" % (v(48 + 2 * i, 2), v(48 + 2 * i, 2), v(200 + 2 * i, 2)))
        ldY = ["buffer_load_dwordx4 v[104:107], v13, %s, s62 offen sc1" % WS,
               "buffer_load_dwordx4 v[108:111], v13, %s, s63 offen sc1" % WS]
        if lm:
            p.add(ay + self.wd_addr())
            p.add(self.stamp("_ln1"))
            p.wvm("flagB_ld")
            p.add(self.spin("fb", [self.ldB], ["v_cmp_ne_u64 vcc, s[50:51], v[126:127]"]))
            p(self.mod_addr())
            if C["gate2"]: p.wvm("yy_st")
            p.add(self.stamp("_modland"))
            p("s_waitcnt lgkmcnt(0)\ns_barrier")
            p.add(self.mod_dma())
            for l in ldY: p.vm(l, "yy")
            w5 = (flat(self.wgu_tr(1)) if C["late2"] else []) + norm + am + ab
        else:
            p.add(norm + ay + am)
            p.add(self.stamp("_ln1"))
            p.wvm("yy_st" if C["gate2"] else "mod")
            p.add(self.stamp("_modland"))
            for l in ldY: p.vm(l, "yy")
            p("s_waitcnt lgkmcnt(0)\ns_barrier")
            w5 = mreads(range(5)) + ab + amul
        p.add(self.stamp("mod"))
        n5 = min(C["q_w5"], len(self.q23))
        nb = min(C["q_b"], len(self.q23) - n5)
        assert n5 % 2 == 0 and nb % 2 == 0 and len(self.q23) - n5 - nb <= 2 * self.nq(1)
        assert C["wd_w5"] <= 3
        p.add(flat(weave(singles(w5), self.q23[:n5] + [d for ks in range(C["wd_w5"]) for d in self.wd_dma(ks)], 0, max(1, int(len(singles(w5)) * C["w5f"])))))
        qb, self.q23 = self.q23[n5:n5 + nb], self.q23[n5 + nb:]
        p.add(self.stamp("_modc"))
        p.wvm("yy")
        p.add(self.stamp("_yy1"))
        p.add(self.spin("yy", ldY, self.phase(15, range(104, 112), 1)))
        p.add(self.stamp("yy_in"))
        for i in range(2):
            for q in range(2):
                p.ds("ds_write2_b32 v%d, v%d, v%d offset0:0 offset1:%d" % (16 + 2 * i + q, 104 + 4 * i + 2 * q, 105 + 4 * i + 2 * q, BSP // 4))
        p("s_waitcnt lgkmcnt(0)\ns_barrier")
        p.add(self.stamp("_ybar"))
        p.ds("ds_read_b128 v[104:107], v30", "y0")
        p.ds("ds_read_b128 v[108:111], v31", "y1")
        if lm: p.add(mreads(range(3)))
        mark = len(p.items)
        for i in range(8):
            if i % 4 == 0: p.wds("y%d" % (i // 4))
            if i >= 4: p("v_and_b32 v%d, v12, v%d" % (104 + i, 104 + i))
            p.add(self.unpack(80 + 2 * i, 104 + i))
        if lm: p.add(amul + mreads((3, 4)))
        for i in range(8):
            p("v_pk_fma_f32 %s, %s, %s, %s" % (v(32 + 2 * i, 2), v(48 + 2 * i, 2), v(80 + 2 * i, 2), v(32 + 2 * i, 2)))
        p.add(self.ln_stats(32, 64, 66))
        p.items[mark:] = flat(weave([[]] + singles(p.items[mark:]), qb))
        p.add(self.stamp("_ln2"))
        p.wds("m4")
        p("s_mov_b32 s57, %d" % H2)
        for h in range(2):
            for i in range(4 * h, 4 * h + 4):
                p("v_pk_fma_f32 %s, %s, v[64:65], v[64:65] op_sel:[0,0,1] op_sel_hi:[1,0,1]" % (v(48 + 2 * i, 2), v(32 + 2 * i, 2)))
            for i in range(4 * h, 4 * h + 4):
                p("v_pk_fma_f32 %s, %s, %s, %s" % (v(48 + 2 * i, 2), v(48 + 2 * i, 2), v(232 + 2 * i, 2), v(216 + 2 * i, 2)))
            for i in range(4 * h, 4 * h + 4):
                p("v_cvt_pk_bf16_f32 v%d, v%d, v%d" % (104 + i, 48 + 2 * i, 49 + 2 * i))
            p.vm("buffer_store_dwordx4 %s, v%d, %s, s57 offen sc1" % (v(104 + 4 * h, 4), 28 + h, WS), "h2_st")
        p.add(self.stamp("h2_st"))
        for i in range(8):
            p("v_cvt_pk_bf16_f32 v%d, v%d, v%d" % (112 + i, 32 + 2 * i, 33 + 2 * i))
        p("""
        s_lshl_b32 s57, s52, 3
        s_and_b32 s58, s53, 7
        s_add_u32 s57, s57, s58
        s_lshl_b32 s57, s57, 2
        s_lshr_b32 s58, s53, 3
        s_add_u32 s57, s57, s58
        s_lshl_b32 s57, s57, 2
        s_add_u32 s57, s57, s3
        s_lshl_b32 s57, s57, 5
        s_add_u32 s57, s57, %d
        v_mov_b32 v8, s57
        v_mov_b32 v6, s50
        v_mov_b32 v7, s51
        s_mov_b32 s49, %d
        """ % (FLAGC, X2))
        self.x2st = [VM("buffer_store_dwordx4 %s, v%d, %s, s49 offen sc1" % (v(112 + 4 * h, 4), 26 + h, WS), "x2_st") for h in range(2)]
        p("s_cmp_ge_u32 s53, 28\ns_cbranch_scc1 L_h_done")
        o = p.out
        o("L_h_done:")
        if "l" in C["mpf"] and not C.get("dbg_noclr"): o(self.wd_l2(C["l2n"][0], C["l2n"][1]))
        if "e" in C["mpf"] and C["t2"] == 1:
            o("""
            s_mul_i32 s57, s3, 49
            s_add_u32 s57, s57, s48
            s_add_u32 s57, s57, 17
            s_lshl_b32 s57, s57, 13
            s_cmp_ge_u32 s48, 15
            s_cselect_b32 s57, s57, 0x%x
            v_lshlrev_b32 v2, 7, v1
            buffer_load_dword v133, v2, %s, s57 offen
            """ % (OOB, SD))
        o(txt(flat(self.x2st)))
        if C["hclr"]:
            o("""
            s_lshr_b32 s57, s48, 1
            s_lshl_b32 s57, s57, 2
            s_and_b32 s58, s48, 1
            s_mul_i32 s57, s57, %d
            s_lshl2_add_u32 s58, s58, s3
            s_mul_i32 s58, s58, %d
            s_add_u32 s57, s57, s58
            s_add_u32 s57, s57, %d
            """ % ((112 * 1024, 14336, HH + 3 * 112 * 1024) if C["nfl"] == 2 else (112 * 1024, 28672, HH + 2 * 112 * 1024)))
            for i in range(14 if C["nfl"] == 2 else 28):
                if C.get("dbg_noclr"):
                    if i == 0: o("s_waitcnt vmcnt(0)\n" + txt(self.flag_store(8, 6, None)))
                    continue
                o("buffer_store_dwordx4 v[120:123], v11, %s, s57 offen offset:%d sc1" % (WS, 1024 * (i % 4)))
                if i % 4 == 3: o("s_add_u32 s57, s57, 4096")
                if C["hpace"] and i >= C["hpace"]: o("s_waitcnt vmcnt(%d)" % C["hpace"])
                if i == C["hclr"]:
                    o("s_waitcnt vmcnt(%d)" % (i + 1))
                    o(txt(self.flag_store(8, 6, None)))
            o("""
            s_lshl_b32 s57, s48, 5
            s_add_u32 s57, s57, %d
            s_cmp_eq_u32 s3, 0
            s_cselect_b32 s57, s57, 0x%x
            v_mov_b32 v8, s57
            s_waitcnt vmcnt(0)
            s_barrier
            """ % (FLAGH, OOB))
        else:
            o("s_waitcnt vmcnt(0)")
        o(txt(self.flag_store(8, 6, None)))
        if "e" in C["mpf"] and C["t2"] == 2:
            o("""
            s_mul_i32 s57, s3, 49
            s_add_u32 s57, s57, s48
            s_add_u32 s57, s57, 17
            s_lshl_b32 s57, s57, 13
            s_cmp_ge_u32 s48, 15
            s_cselect_b32 s57, s57, 0x%x
            v_lshlrev_b32 v2, 7, v1
            buffer_load_dword v133, v2, %s, s57 offen
            """ % (OOB, SD))
        if "l" in C["mpf"] and C.get("dbg_noclr"): o(self.wd_l2(C["l2n"][0], C["l2n"][1]))
        o("s_cmp_lg_u32 s2, 255\ns_cbranch_scc1 L_exit\nv_mov_b32 v8, %d" % EPOCH)
        o(txt(self.flag_store(8, 6, None)))
        o("s_branch L_exit")

    def finish(self):
        p = self.p
        p("L_exit:")
        if self.probe:
            p("""
            s_waitcnt vmcnt(0)
            %s
            s_waitcnt lgkmcnt(0)
            s_sub_u32 s57, s98, s100
            s_mul_i32 s57, s57, 10
            s_cmp_ge_u32 s53, 28
            s_cselect_b32 s57, 0, s57
            s_add_u32 s57, s57, 6000
            L_probe:
            s_memrealtime s[58:59]
            s_waitcnt lgkmcnt(0)
            s_sub_u32 s58, s58, s100
            s_cmp_lt_u32 s58, s57
            s_cbranch_scc1 L_probe
            """ % ("s_memrealtime s[98:99]" if self.probe == "end" else "s_mov_b32 s98, s100" if self.probe == "none" else ""))
        if self.stamps:
            p("""
            s_waitcnt vmcnt(0) lgkmcnt(0)
            %s s[64:65]
            s_add_u32 s4, s4, %d
            s_addc_u32 s5, s5, 0
            s_lshl_b32 s57, s53, 3
            s_add_u32 s57, s57, s52
            s_lshl_b32 s57, s57, 2
            s_add_u32 s57, s57, s3
            s_lshl_b32 s57, s57, 7
            v_mov_b32 v2, s57
            s_waitcnt lgkmcnt(0)
            """ % ("s_memtime" if self.cfg.get("cyc") else "s_memrealtime", STAMP_OFF))
            regs = [100] + [68 + 2 * i for i in range(len(self.names) - 1)] + [64]
            for i, r in enumerate(regs):
                p("v_mov_b32 v3, s%d" % r)
                p("buffer_store_dword v3, v2, %s, 0 offen offset:%d" % (WS, 4 * i))
        p("L_end:")
        p("s_endpgm")

    def build(self):
        import gen2
        self.prologue(); self.p1(); self.conv(); self.helper(); self.stageB()
        gen2.ffn(self)
        self.finish()
        lines = self.p.resolve() + self.p.tail + ["L_code_end:", "s_endpgm", ".fill 2048, 4, 0xbf810000"]
        lines = [l.replace("FSH+5", str(self.cfg["fsh"] + 5)).replace("FSH", str(self.cfg["fsh"])) for l in lines]
        lines, added = hz.fix(fmt(lines), verbose="-v" in sys.argv)
        name = NAME + "_kernel"
        head = open("head.txt").read()
        ent = entry(name).replace(".p2align 8", ".p2align 12\n.p2align 8") if self.cfg["warm"] else entry(name)
        def whole(ls):
            return head + "; @launch grid=(256,1,1) block=(256,1,1) lds=%d\n" % LDS_BYTES + HEAD + ent + "\n".join(ls) + "\n" + kd(name, 512, 102, 256)
        if self.cfg["warm"]: lines = self.page_stubs(lines, whole)
        return whole(lines), added

    def page_stubs(self, lines, whole):
        import subprocess, re, os
        tmp = "_pg%d" % os.getpid()
        open(tmp + ".s", "w").write(whole(lines + ["L_pg%d:" % k for k in range(1, 6)]))
        subprocess.run(["clang", "-x", "assembler", "-target", "amdgcn-amd-amdhsa", "-mcpu=gfx950", "-c", tmp + ".s", "-o", tmp + ".o"], check=True)
        dis = subprocess.run(["llvm-objdump", "-d", "--mcpu=gfx950", tmp + ".o"], capture_output=True, text=True).stdout
        dis = dis[dis.index("<L_page>:"):]
        sizes = [4 * len(m.group(1).split()) for m in re.finditer(r"// [0-9A-F]{12}: ([0-9A-F ]+)", dis)]
        i0, i1 = lines.index("L_page:"), lines.index("L_end:")
        want = [4096 * k + o for k in range(8) for o in self.cfg["warm"]]
        out, off, k, at = lines[:i0 + 1], 0, 0, []
        for ln in lines[i0 + 1:i1]:
            ins = not (ln.endswith(":") or ln.startswith("."))
            if ins and off >= want[len(at)]:
                at.append(len(out)); out.append(None); off += 4
            out.append(ln)
            if ins: off += sizes[k]; k += 1
        per = len(self.cfg["warm"])
        pages = (len(at) + per - 1) // per
        assert pages >= 5
        solo = 5 if self.cfg["warm_at"] in (2, 4) else 4
        for n, idx in enumerate(at):
            pg, sub = n // per + 1, n % per
            last = n + 1 == len(at) or (sub == per - 1 and pg < solo)
            lab = "L_pg%d" % pg if sub == 0 else "L_pg%d_%d" % (pg, sub)
            nxt = "L_warm" if last else ("L_pg%d" % (pg + 1) if sub == per - 1 else "L_pg%d_%d" % (pg, sub + 1))
            out[idx] = "%s:\n    s_cbranch_execz %s" % (lab, nxt)
        return out + lines[i1:]

def variant(spec, stamps=True):
    nm, drop, kv = (spec.split(":") + ["", ""])[:3]
    g = Gen(stamps)
    g.p.drop = drop or None
    if "dbg_drop" in kv: g.p.drop = eval(kv.split("dbg_drop=")[1].split(",")[0]).replace("-", "|") or None
    for it in filter(None, kv.split(",")):
        k, val = it.split("=")
        g.cfg[k] = val.split("/") if k == "st" else eval(val.replace("/", ","))
    open("var_%s.s" % nm, "w").write(g.build()[0])
    open("var_%s.names" % nm, "w").write(" ".join(g.names + ["end"]))
    return "var_%s.s" % nm

if __name__ == "__main__":
    mode = sys.argv[1] if len(sys.argv) > 1 else "all"
    if mode == "var":
        for spec in sys.argv[2:]: variant(spec)
    elif mode == "rel":
        for spec in sys.argv[2:]: variant(spec, False)
    elif mode == "probe":
        for nm in sys.argv[2:]:
            open("probe_%s.s" % nm, "w").write(Gen(False, nm).build()[0])
    else:
        for stamps, fn in ((False, "k.s"), (True, "k_st.s")):
            g = Gen(stamps)
            out, added = g.build()
            open(fn, "w").write(out)
            if stamps: open("k_st.names", "w").write(" ".join(g.names + ["end"]))
            print(fn, "nops added:", added, "lines:", out.count("\n"))
```
